```python
import torch

def _softmax(x, axis=-1):
    return torch.softmax(x, dim=axis)
def _gelu(x):
    return torch.nn.functional.gelu(x, approximate="tanh")
def _silu(x):
    return torch.nn.functional.silu(x)
def _sigmoid(x):
    return torch.sigmoid(x)
def _layernorm(x, axis=-1, eps=1e-5):
    m = x.mean(dim=axis, keepdim=True)
    v = x.var(dim=axis, keepdim=True, unbiased=False)
    return (x - m) / torch.sqrt(v + eps)
def _scatter_add(tgt, idx, src, axis=0):
    return tgt.clone().index_add_(axis, idx, src)
def _segment_sum(src, seg, n):
    out = torch.zeros((n,) + src.shape[1:], dtype=src.dtype)
    return out.index_add_(0, seg, src)
def _pad(x, pw):
    flat = tuple(v for pair in reversed(pw) for v in pair)
    return torch.nn.functional.pad(x, flat)

kernel_name = 'sequential_preLN__sliding_block_cached__glu_gated_glu__decode'

def setup_inputs():

    _w = (lambda a: (lambda t: t.to(torch.bfloat16) if t.is_floating_point() else t)(torch.as_tensor(a)))
    def _A_setup():
        B, Sq, D = 8, 1, 640
        Hq, Hkv, Sk, Dh = 32, 32, 4096, 128
        assert Hq % Hkv == 0, (Hq, Hkv)
        return {
            "x": _w((lambda *s: torch.randn(*s, dtype=torch.bfloat16) * 0.05)(B, Sq, D)),
            "k_cache": _w((lambda *s: torch.randn(*s, dtype=torch.bfloat16) * 3.2)(B, Hkv, Sk, Dh)),
            "v_cache": _w((lambda *s: torch.randn(*s, dtype=torch.bfloat16) * 0.4)(B, Hkv, Sk, Dh)),
            "wq": _w((lambda *s: torch.randn(*s, dtype=torch.bfloat16) * 3.2)(D, Hq * Dh) * (D ** -0.5)),
            "wo": _w((lambda *s: torch.randn(*s, dtype=torch.bfloat16) * 0.4)(Hq * Dh, D) * ((Hq * Dh) ** -0.5)),
        }
    _A_in = _A_setup()

    def _B_setup():
        B, S, D, F = 8, 1, 640, 1728
        return {
            "x": _w((lambda *s: torch.randn(*s, dtype=torch.bfloat16) * 0.05)(B, S, D)),
            "w_gate": _w((lambda *s: torch.randn(*s, dtype=torch.bfloat16) * 0.1)(D, F)),
            "w_up": _w((lambda *s: torch.randn(*s, dtype=torch.bfloat16) * 0.05)(D, F)),
            "w_down": _w((lambda *s: torch.randn(*s, dtype=torch.bfloat16) * 0.05)(F, D)),
        }
    _B_in = _B_setup()

    return {
        "A_x": _A_in["x"],
        "A_k_cache": _A_in["k_cache"],
        "A_v_cache": _A_in["v_cache"],
        "A_wq": _A_in["wq"],
        "A_wo": _A_in["wo"],
        "B_x": _B_in["x"],
        "B_w_gate": _B_in["w_gate"],
        "B_w_up": _B_in["w_up"],
        "B_w_down": _B_in["w_down"],
    }

def reference(A_x, A_k_cache, A_v_cache, A_wq, A_wo, B_x, B_w_gate, B_w_up, B_w_down):
    def _A_ref(x, k_cache, v_cache, wq, wo):
        B, Sq, D = x.shape
        Hq, Dh = 32, 128
        Hkv, Sk = k_cache.shape[1], k_cache.shape[2]
        W = min(4096, max(256, Sk // 4))
        rep = Hq // Hkv
        q = (lambda x, *d: x.permute(*d))((x @ wq).reshape(B, Sq, Hq, Dh), 0, 2, 1, 3)
        k = (lambda x, n, axis: torch.repeat_interleave(x, n, dim=axis))(k_cache[:, :, Sk - W:, :], rep, axis=1)
        v = (lambda x, n, axis: torch.repeat_interleave(x, n, dim=axis))(v_cache[:, :, Sk - W:, :], rep, axis=1)
        scores = torch.einsum("bhqd,bhkd->bhqk", q, k) * (Dh ** -0.5)
        p = _softmax(scores, axis=-1)
        o = torch.einsum("bhqk,bhkd->bhqd", p, v)
        return (lambda x, *d: x.permute(*d))(o, 0, 2, 1, 3).reshape(B, Sq, Hq * Dh) @ wo

    def _B_ref(x, w_gate, w_up, w_down):
        g = torch.einsum("bsd,df->bsf", x, w_gate)
        u = torch.einsum("bsd,df->bsf", x, w_up)
        h = _sigmoid(g) * u
        return torch.einsum("bsf,fd->bsd", h, w_down)

    x = A_x
    h = x + _A_ref(_layernorm(x, axis=-1), A_k_cache, A_v_cache, A_wq, A_wo)
    h2 = h + _B_ref(_layernorm(h, axis=-1), B_w_gate, B_w_up, B_w_down)
    return h2
```

```python
import sys, copy
KN = "sequential_preLN__sliding_block_cached__glu_gated_glu__decode_kernel"

ACC1 = 0
ACC1_B = 3584
ACC3 = 28672
FLAGS = 59392
TICK = FLAGS + 4096
SU = 69632
WS_USED = 31 * 4096
STAMP = 1 << 20

L_Q = 0
L_ML = 4096
L_PV = 5120
L_OP = 9216
L_HN = 30720
HN_STR = 1312
L_GP = 41472
LDS_BYTES = 57856

class Asm:
    def __init__(self):
        self.L = []
        self.vm = []
    def __call__(self, s):
        for x in s.split("\n"):
            x = x.strip()
            if x:
                self.L.append(x if x.endswith(":") else "  " + x)
    def vmem(self, s, tag=None):
        self(s)
        self.vm.append(tag)
        assert len(self.vm) <= 63, "too many outstanding vmem"
    def need(self, tag):
        if tag in self.vm:
            i = len(self.vm) - 1 - self.vm[::-1].index(tag)
            n = len(self.vm) - 1 - i
            self(f"s_waitcnt vmcnt({n})")
            self.vm = self.vm[i + 1:]
    def window(self, n):
        if len(self.vm) > n:
            self(f"s_waitcnt vmcnt({n})")
            self.vm = self.vm[len(self.vm) - n:] if n else []

def vr(b, n=4): return f"v[{b}:{b+n-1}]"
def ar(b, n=4): return f"a[{b}:{b+n-1}]"
DPPF = "row_mask:0xf bank_mask:0xf"

def allreduce(a, op, v, t, rows=4):
    for c in ["quad_perm:[1,0,3,2]", "quad_perm:[2,3,0,1]", "row_half_mirror", "row_mirror"]:
        a("s_nop 1")
        a(f"{op}_dpp v{v}, v{v}, v{v} {c} {DPPF}")
    a(f"v_mov_b32 v{t}, v{v}")
    a("s_nop 1")
    a(f"v_permlane16_swap_b32 v{v}, v{t}")
    a("s_nop 0")
    a(f"{op} v{v}, v{v}, v{t}")
    if rows == 4:
        a(f"v_mov_b32 v{t}, v{v}")
        a("s_nop 1")
        a(f"v_permlane32_swap_b32 v{v}, v{t}")
        a("s_nop 0")
        a(f"{op} v{v}, v{v}, v{t}")

def rbf(a, d, s):
    a(f"v_cvt_pk_bf16_f32 v{d}, v{s}, v{s}")
    a(f"v_and_b32 v{d}, 0xffff0000, v{d}")

def mixseq(main, extra, upto=None, skip=0):
    upto = len(main) if upto is None else upto
    seq = list(main[:skip]); acc = 0.0; ri = 0
    for x in main[skip:upto]:
        acc += len(extra) / (upto - skip)
        while acc >= 1.0 - 1e-9 and ri < len(extra):
            seq.append(extra[ri]); ri += 1; acc -= 1.0
        seq.append(x)
    return seq + extra[ri:] + list(main[upto:])

def gen(rot=16, W=10, stamps=False, wq_upto=54, dry=True, tailW=8, bound=200000, slp=6, fpoll='v'):
    a = Asm()
    def spin():
        return f"s_add_u32 s100, s100, 1\ns_cmp_gt_u32 s100, {bound}\ns_cbranch_scc1 L_end\n" if bound else ''
    LANE, KOFF, VOFF, QOFF, OOFF = 1, 2, 3, 4, 5
    T0, T1 = 6, 7
    M = 8
    XN = 12
    T2 = 15
    BA = [16, 20]
    D = [24, 28]
    QB = 32
    P = 48
    TT = 52
    BIG = 64
    RING = 96; NRING = 20
    NQR = 12
    RAW = 176
    APV, AOP, AAT, AL16 = 84, 85, 89, 90
    WOFF = 91
    def stamp(i):
        if stamps:
            a(f"s_memrealtime s[{80+2*i}:{81+2*i}]")

    a(f"s_cmp_ge_u32 s2, 256\ns_cbranch_scc1 L_end")
    a("s_load_dwordx16 s[40:55], s[0:1], 0")
    a("s_load_dwordx8 s[56:63], s[0:1], 64")
    a("s_mov_b32 s100, 0")
    stamp(0)
    a(f"""
    v_lshrrev_b32 v{T0}, 6, v0
    v_and_b32 v{LANE}, 63, v0
    v_readfirstlane_b32 s3, v{T0}
    v_lshrrev_b32 v{T1}, 4, v{LANE}
    v_and_b32 v{T2}, 15, v0
    v_lshlrev_b32 v{VOFF}, 4, v0
    v_and_b32 v{TT}, 3, v0
    v_lshl_add_u32 v{TT}, v{T1}, 2, v{TT}
    v_lshlrev_b32 v{TT}, 4, v{TT}
    v_lshl_add_u32 v{TT}, v{T0}, 10, v{TT}
    v_bfe_u32 v{TT+1}, v0, 2, 2
    v_lshl_add_u32 v{KOFF}, v{TT+1}, 8, v{TT}
    v_mul_u32_u24 v{TT}, 160, v{T0}
    v_add_u32 v{TT}, v{TT}, v{T1}
    v_lshlrev_b32 v{TT+1}, 4, v{T2}
    v_lshl_add_u32 v{QOFF}, v{TT}, 13, v{TT+1}
    v_lshl_add_u32 v{TT+2}, v{T2}, 2, v{TT}
    v_lshlrev_b32 v{TT+2}, 1, v{TT+2}
    v_lshlrev_b32 v{AL16}, 4, v{LANE}
    v_lshlrev_b32 v{TT+3}, 2, v{LANE}
    s_and_b32 s4, s2, 31
    s_lshr_b32 s5, s2, 5
    s_lshl_b32 s6, s2, 20
    s_add_u32 s6, s6, 0xC0000
    s_mul_i32 s64, s2, {rot*1024}
    s_and_b32 s64, s64, 0x3ffff
    s_mul_i32 s66, s5, 1280
    s_lshl_b32 s7, s4, 8
    s_mov_b32 s10, 0x40000
    s_mov_b32 s11, 0x20000
    s_mov_b32 s14, 0x40000
    s_mov_b32 s15, 0x20000
    s_mov_b32 s26, 10240
    s_mov_b32 s27, 0x20000
    s_sub_u32 s18, {640*8192}, s7
    s_mov_b32 s19, 0x20000
    s_waitcnt lgkmcnt(0)
    s_mov_b32 s24, s40
    s_mov_b32 s25, s41
    s_add_u32 s8, s42, s6
    s_addc_u32 s9, s43, 0
    s_add_u32 s16, s46, s7
    s_addc_u32 s17, s47, 0
    """)
    a.vmem(f"buffer_load_dwordx4 {vr(BIG)}, v{AL16}, s[24:27], s66 offen", "x")
    a.vmem(f"buffer_load_dword v{BIG+4}, v{TT+3}, s[24:27], s66 offen offset:1024", "x")
    for u in range(3):
        a.vmem(f"buffer_load_ushort v{XN+u}, v{TT+2}, s[24:27], s66 offen offset:{u*128}", "x")

    def ldK(i):
        a(f"s_add_u32 s65, s64, {i*4096}\ns_and_b32 s65, s65, 0x3ffff")
        a.vmem(f"buffer_load_dwordx4 {ar(4*i)}, v{KOFF}, s[8:11], s65 offen nt", ("k", i))
    st = {"k": 0, "v": 0, "q": 0}
    def ldV(i):
        assert i - st["v"] < NRING and st["q"] == 40
        a(f"s_add_u32 s65, s64, {i*4096}\ns_and_b32 s65, s65, 0x3ffff")
        a.vmem(f"buffer_load_dwordx4 {vr(RING+4*(i%NRING))}, v{VOFF}, s[12:15], s65 offen nt", ("v", i))
    def ldQ(t):
        a(f"s_mov_b32 s65, {t*32768}")
        a.vmem(f"buffer_load_dwordx4 {vr(RING+4*(t%NQR))}, v{QOFF}, s[16:19], s65 offen nt", ("q", t))
    def ldO(j):
        assert j < st["k"]
        t, G = j // 5, j % 5
        a(f"s_mov_b32 s65, {t*5120}")
        a.vmem(f"buffer_load_dwordx4 {ar(4*j)}, v{OOFF}, s[20:23], s65 offen offset:{G*256} nt", ("o", j))
    LD = {"k": ldK, "v": ldV, "q": ldQ, "o": ldO}

    Ks = [("k", i) for i in range(64)]; Qs = [("q", t) for t in range(40)]
    Vs = [("v", i) for i in range(64)]; Os = [("o", j) for j in range(40)]
    seqK = mixseq(Ks, Qs, upto=wq_upto)
    NFIRST = 8
    for x in seqK[:NFIRST]:
        LD[x[0]](x[1])
    a(f"""
    s_add_u32 s12, s44, s6
    s_addc_u32 s13, s45, 0
    s_mul_i32 s7, s4, 163840
    s_add_u32 s20, s48, s7
    s_addc_u32 s21, s49, 0
    s_mov_b32 s22, 163840
    s_mov_b32 s23, 0x20000
    s_mov_b32 s28, s62
    s_mov_b32 s29, s63
    s_mov_b32 s30, {WS_USED}
    s_mov_b32 s31, 0x20000
    s_mov_b32 s36, s58
    s_mov_b32 s37, s59
    s_mov_b32 s38, 10240
    s_mov_b32 s39, 0x20000
    v_lshl_add_u32 v{TT}, v{T0}, 5, v{T1}
    v_mul_u32_u24 v{TT}, 1280, v{TT}
    v_add_u32 v{OOFF}, v{TT}, v{TT+1}
    """)
    a(f"""
    s_cmp_lt_u32 s2, 17
    s_cselect_b32 s7, 0, -1
    s_lshl_b32 s65, s2, 12
    v_mov_b32 v{BIG+8}, s7
    v_mov_b32 v{BIG+9}, s7
    v_mov_b32 v{BIG+10}, s7
    v_mov_b32 v{BIG+11}, s7
    """)
    a.vmem(f"buffer_store_dwordx4 {vr(BIG+8)}, v{VOFF}, s[28:31], s65 offen sc1", "init")
    a(f"""
    v_and_b32 v{TT}, 1, v0
    v_lshlrev_b32 v{TT}, 4, v{TT}
    v_mov_b32 v{TT+1}, 0xffff
    v_lshlrev_b32 v{TT}, v{TT}, v{TT+1}
    v_lshrrev_b32 v{TT+1}, 1, v{T2}
    """)
    for r in range(4):
        a(f"v_cmp_eq_u32 vcc, {r}, v{TT+1}\ns_nop 1\nv_cndmask_b32 v{M+r}, 0, v{TT}, vcc")
    a.need("x")
    X = BIG + 12
    for i in range(5):
        a(f"v_lshlrev_b32 v{X+2*i}, 16, v{BIG+i}\nv_and_b32 v{X+2*i+1}, 0xffff0000, v{BIG+i}")
    a(f"v_add_f32 v{TT}, v{X}, v{X+1}")
    for i in range(2, 10):
        a(f"v_add_f32 v{TT}, v{TT}, v{X+i}")
    allreduce(a, "v_add_f32", TT, TT + 1)
    a(f"v_mul_f32 v{TT}, 0x3acccccd, v{TT}")
    a(f"v_mov_b32 v{TT+2}, 0")
    for i in range(10):
        a(f"v_sub_f32 v{X+i}, v{X+i}, v{TT}\nv_fmac_f32 v{TT+2}, v{X+i}, v{X+i}")
    allreduce(a, "v_add_f32", TT + 2, TT + 1)
    a(f"v_mul_f32 v{TT+2}, 0x3acccccd, v{TT+2}")
    rbf(a, TT, TT)
    rbf(a, TT + 2, TT + 2)
    a(f"v_add_f32 v{TT+2}, 0x3727c5ac, v{TT+2}")
    rbf(a, TT + 2, TT + 2)
    a(f"v_sqrt_f32 v{TT+2}, v{TT+2}\ns_nop 0")
    rbf(a, TT + 2, TT + 2)
    a(f"v_rcp_f32 v{TT+2}, v{TT+2}")
    for u in range(3):
        a(f"v_lshlrev_b32 v{XN+u}, 16, v{XN+u}\nv_sub_f32 v{XN+u}, v{XN+u}, v{TT}")
        rbf(a, XN + u, XN + u)
        a(f"v_mul_f32 v{XN+u}, v{XN+u}, v{TT+2}\nv_cvt_pk_bf16_f32 v{XN+u}, v{XN+u}, v{XN+u}")
    a("s_nop 1")

    def selB(dst, src, lane):
        for r in range(4):
            a(f"v_and_b32_dpp v{dst+r}, v{src}, v{M+r} row_newbcast:{lane} {DPPF}")
    def useQ(t):
        B = BA[t & 1]
        selB(B, XN + (t >> 4), t & 15)
        a.need(("q", t))
        a("s_nop 1")
        c = "0" if t == 0 else vr(D[0])
        a(f"v_mfma_f32_16x16x32_bf16 {vr(D[0])}, {vr(RING+4*(t%NQR))}, {vr(B)}, {c}")
        st["q"] = t + 1

    full = seqK + mixseq(Vs, Os, skip=10, upto=60)
    pos = NFIRST
    qdone = 0
    def issue(n=1):
        nonlocal pos
        for _ in range(n):
            if pos < len(full):
                x = full[pos]; pos += 1
                LD[x[0]](x[1])
    idx = {x: i for i, x in enumerate(full)}
    while qdone < 40:
        while qdone < 40 and idx[("q", qdone)] <= pos - W:
            useQ(qdone); qdone += 1
        if qdone < 40:
            x = full[pos]
            if x[0] == "q":
                assert x[1] - qdone < NQR
            assert x[0] != "v"
            a.window(W + 2)
            issue()
    a(f"""
    v_lshrrev_b32 v{TT}, 4, v{LANE}
    v_and_b32 v{TT+1}, 15, v0
    v_lshl_add_u32 v{TT+2}, v{TT}, 5, v{TT+1}
    v_lshlrev_b32 v{TT+2}, 2, v{TT+2}
    v_and_b32 v{TT+3}, 8, v0
    v_lshl_add_u32 v{TT+2}, v{TT+3}, 8, v{TT+2}
    s_lshl_b32 s7, s3, 9
    v_add_u32 v{TT+2}, s7, v{TT+2}
    v_and_b32 v{TT+3}, 3, v0
    v_lshl_add_u32 v{TT+3}, v{TT}, 2, v{TT+3}
    v_lshlrev_b32 v{TT+3}, 5, v{TT+3}
    """)
    for r in range(4):
        a(f"ds_write_b32 v{TT+2}, v{D[0]+r} offset:{L_Q + r*32}")
    issue()
    a("s_waitcnt lgkmcnt(0)\ns_barrier")
    QP = RAW
    for w in range(4):
        for hf in range(2):
            a(f"ds_read_b128 {vr(QP+8*w+4*hf)}, v{TT+3} offset:{L_Q + w*512 + hf*16}")
    assert "init" not in a.vm
    a(f"""
    s_cmp_lt_u32 s2, 31
    s_cselect_b32 s7, s3, 1
    s_cmp_eq_u32 s7, 0
    s_cbranch_scc0 L_nosig
    s_mov_b32 s7, 1
    s_atomic_add s7, s[60:61], 0x0
    L_nosig:
    s_waitcnt lgkmcnt(0)
    """)
    for j in range(8):
        a(f"v_add_f32 v{QP+j}, v{QP+j}, v{QP+8+j}\nv_add_f32 v{QP+16+j}, v{QP+16+j}, v{QP+24+j}\nv_add_f32 v{QP+j}, v{QP+j}, v{QP+16+j}")
    for j in range(4):
        a(f"v_cvt_pk_bf16_f32 v{QP+j}, v{QP+2*j}, v{QP+2*j+1}")
    for t in range(4):
        m = 0x000F000F << (4 * t)
        a(f"s_mov_b32 s68, {m:#x}\ns_mov_b32 s69, {m:#x}")
        for j in range(4):
            a(f"v_cndmask_b32 v{QB+4*t+j}, 0, v{QP+j}, s[68:69]")
    for s in range(1, 4):
        m = 0x11111111 << s
        a(f"s_mov_b32 s{68+2*s}, {m:#x}\ns_mov_b32 s{69+2*s}, {m:#x}")
    issue()
    stamp(1)
    def post(u):
        Dd = D[u & 1]; dst = P + (u >> 2) if (u & 3) == 0 else TT
        a(f"v_mov_b32_dpp v{TT}, v{Dd} quad_perm:[0,0,0,0] {DPPF}")
        a(f"v_add_f32_dpp v{TT}, v{Dd+1}, v{TT} quad_perm:[1,1,1,1] {DPPF}")
        a(f"v_add_f32_dpp v{TT}, v{Dd+2}, v{TT} quad_perm:[2,2,2,2] {DPPF}")
        a(f"v_add_f32_dpp v{dst}, v{Dd+3}, v{TT} quad_perm:[3,3,3,3] {DPPF}")
        if u & 3:
            s = u & 3
            a(f"v_cndmask_b32 v{P+(u>>2)}, v{P+(u>>2)}, v{TT}, s[{68+2*s}:{69+2*s}]")
        else:
            a("s_nop 0")
    for u in range(16):
        while idx[("k", 4 * u + 3)] > pos - min(W, 7):
            issue()
        a.need(("k", 4 * u + 3))
        for t in range(4):
            c = "0" if t == 0 else vr(D[u & 1])
            a(f"v_mfma_f32_16x16x32_bf16 {vr(D[u&1])}, {ar(16*u+4*t)}, {vr(QB+4*t)}, {c}")
        st["k"] = 4 * u + 4
        if u == 0:
            a("s_nop 4")
        else:
            post(u - 1)
        if u % 3 == 2:
            assert full[pos][0] != "o" or full[pos][1] < 4 * u
            issue()
    a("s_nop 3")
    post(15)
    S = TT + 2
    for i in range(2):
        a(f"v_cvt_pk_bf16_f32 v{TT}, v{P+2*i}, v{P+2*i+1}")
        a(f"v_lshlrev_b32 v{S+2*i}, 16, v{TT}\nv_and_b32 v{S+2*i+1}, 0xffff0000, v{TT}")
        a(f"v_mul_f32 v{S+2*i}, 0x3db504f3, v{S+2*i}\nv_mul_f32 v{S+2*i+1}, 0x3db504f3, v{S+2*i+1}")
        a(f"v_cvt_pk_bf16_f32 v{TT}, v{S+2*i}, v{S+2*i+1}")
        a(f"v_lshlrev_b32 v{S+2*i}, 16, v{TT}\nv_and_b32 v{S+2*i+1}, 0xffff0000, v{TT}")
    MX, LS = TT + 6, TT + 7
    a(f"v_max_f32 v{MX}, v{S}, v{S+1}\nv_max3_f32 v{MX}, v{MX}, v{S+2}, v{S+3}")
    allreduce(a, "v_max_f32", MX, TT)
    issue()
    for i in range(4):
        a(f"v_sub_f32 v{P+i}, v{S+i}, v{MX}\nv_mul_f32 v{P+i}, 0x3fb8aa3b, v{P+i}\nv_exp_f32 v{P+i}, v{P+i}")
    a(f"s_nop 0\nv_add_f32 v{LS}, v{P}, v{P+1}\nv_add_f32 v{TT}, v{P+2}, v{P+3}\nv_add_f32 v{LS}, v{LS}, v{TT}")
    allreduce(a, "v_add_f32", LS, TT)
    a(f"s_lshl_b32 s7, s3, 3\nv_mov_b32 v{TT}, s7\nds_write_b64 v{TT}, v[{MX}:{LS}] offset:{L_ML}")
    issue()
    a(f"s_waitcnt lgkmcnt(0)\ns_barrier\nv_mov_b32 v{TT}, 0")
    ML = BIG
    a(f"ds_read_b128 {vr(ML)}, v{TT} offset:{L_ML}\nds_read_b128 {vr(ML+4)}, v{TT} offset:{L_ML+16}")
    issue()
    a("s_waitcnt lgkmcnt(0)")
    a(f"v_max_f32 v{MX}, v{ML}, v{ML+2}\nv_max3_f32 v{MX}, v{MX}, v{ML+4}, v{ML+6}")
    for w in range(4):
        a(f"v_sub_f32 v{ML+2*w}, v{ML+2*w}, v{MX}\nv_mul_f32 v{ML+2*w}, 0x3fb8aa3b, v{ML+2*w}\nv_exp_f32 v{ML+2*w}, v{ML+2*w}")
    for i in range(4):
        a(f"v_sub_f32 v{P+i}, v{S+i}, v{MX}\nv_mul_f32 v{P+i}, 0x3fb8aa3b, v{P+i}\nv_exp_f32 v{P+i}, v{P+i}")
    a(f"v_mul_f32 v{LS}, v{ML}, v{ML+1}")
    for w in range(1, 4):
        a(f"v_fmac_f32 v{LS}, v{ML+2*w}, v{ML+2*w+1}")
    a(f"v_rcp_f32 v{LS}, v{LS}\ns_nop 0")
    PP = XN - 0
    for i in range(4):
        a(f"v_mul_f32 v{P+i}, v{P+i}, v{LS}")
    for i in range(4):
        a(f"v_cvt_pk_bf16_f32 v{P+i}, v{P+i}, v{P+i}")
    stamp(2)
    a(f"""
    v_lshrrev_b32 v{T1}, 4, v{LANE}
    v_and_b32 v{TT}, 1, v0
    v_lshl_add_u32 v{TT}, v{TT}, 2, v{T1}
    s_lshl_b32 s7, s3, 4
    v_add_u32 v{TT}, s7, v{TT}
    v_bfe_u32 v{TT+1}, v0, 1, 2
    v_lshlrev_b32 v{TT+1}, 2, v{TT+1}
    v_lshl_add_u32 v{APV}, v{TT}, 4, v{TT+1}
    v_bfe_u32 v{TT}, v0, 2, 5
    v_mul_u32_u24 v{TT}, 20, v{TT}
    v_lshrrev_b32 v{TT+1}, 7, v0
    v_mul_u32_u24 v{TT+1}, 3, v{TT+1}
    v_and_b32 v{TT+2}, 3, v0
    v_add3_u32 v{TT}, v{TT}, v{TT+1}, v{TT+2}
    v_lshlrev_b32 v{AAT}, 2, v0
    """)
    for k in range(4):
        a(f"""
        v_add_u32 v{TT+1}, {6*k}, v{TT}
        v_lshrrev_b32 v{TT+2}, 5, v{TT+1}
        v_lshlrev_b32 v{TT+2}, 8, v{TT+2}
        v_and_b32 v{TT+3}, 7, v{TT+1}
        v_lshl_add_u32 v{TT+2}, v{TT+3}, 4, v{TT+2}
        v_bfe_u32 v{TT+3}, v{TT+1}, 3, 2
        v_lshl_add_u32 v{AOP+k}, v{TT+3}, 2, v{TT+2}
        """)
    a(f"""
    s_and_b32 s70, s2, 7
    s_lshr_b32 s71, s2, 3
    s_min_u32 s72, s70, 3
    s_mul_i32 s73, s70, 3
    s_add_u32 s73, s73, s72
    s_cmp_lt_u32 s70, 3
    s_cselect_b32 s72, 4, 3
    s_lshl_b32 s7, s70, 8
    s_add_u32 s7, s7, {TICK}
    s_add_u32 s74, s62, s7
    s_addc_u32 s75, s63, 0
    s_mul_i32 s67, s5, {ACC1_B}
    s_mov_b32 s68, 0x88888888
    s_mov_b32 s69, 0x88888888
    """)

    def usePV(i):
        B = BA[i & 1]; u, t = i >> 2, i & 3
        selB(B, P + (u >> 2), 4 * t + (u & 3))
        a.need(("v", i))
        a("s_nop 1")
        c = "0" if i == 0 else vr(D[0])
        a(f"v_mfma_f32_16x16x32_bf16 {vr(D[0])}, {vr(RING+4*(i%NRING))}, {vr(B)}, {c}")
        st["v"] = i + 1
    vdone = 0
    checked = False
    while pos < len(full):
        n = 0
        while vdone < 64 - tailW and idx[("v", vdone)] <= pos - W and n < 3:
            usePV(vdone); vdone += 1; n += 1
        x = full[pos]
        if x[0] == "v":
            while x[1] - vdone >= NRING:
                usePV(vdone); vdone += 1
        a.window(W + 6)
        issue()
        if x == ("v", 36):
            a(f"v_mov_b32 v{TT+1}, 0")
            a.vmem(f"global_load_dword v{TT}, v{TT+1}, s[60:61] sc1", "ichk")
        if x == ("v", 48):
            a.need("ichk")
            a(f"""
            L_ichk:
            v_cmp_gt_u32 vcc, 31, v{TT}
            s_cbranch_vccz L_iok
            {spin()}
            global_load_dword v{TT}, v{TT+1}, s[60:61] sc1
            s_waitcnt vmcnt(0)
            s_branch L_ichk
            L_iok:
            """)
    while vdone < 64 - tailW:
        usePV(vdone); vdone += 1
    stamp(3)
    a(f"""
    s_lshl_b32 s7, s72, 1
    s_cmp_lt_u32 s71, s7
    s_cbranch_scc1 L_roleG
    s_sub_u32 s77, s71, 8
    s_cmp_lt_u32 s77, 10
    s_cbranch_scc1 L_roleD
    """)
    vm0 = list(a.vm)

    def att_tail(name, pre):
        a.vm = list(vm0)
        pre = list(pre)
        per = (len(pre) + tailW - 1) // tailW
        for i in range(64 - tailW, 64):
            usePV(i)
            if i < 63:
                for _ in range(per):
                    if pre: pre.pop(0)()
        for j in range(40):
            assert ("o", j) not in a.vm
        a(f"s_lshl_b32 s7, s3, 10\nv_add_u32 v{TT}, s7, v{AL16}\ns_mul_i32 s7, s3, 5120\nv_add_u32 v{T2}, s7, v{AL16}")
        a("s_nop 3")
        a(f"ds_write_b128 v{TT}, {vr(D[0])} offset:{L_PV}")
        a("s_waitcnt lgkmcnt(0)\ns_barrier")
        assert L_PV % 256 == 0
        o = L_PV // 256
        a(f"ds_read2st64_b32 v[{BA[0]}:{BA[0]+1}], v{APV} offset0:{o} offset1:{o+4}")
        a(f"ds_read2st64_b32 v[{BA[0]+2}:{BA[0]+3}], v{APV} offset0:{o+8} offset1:{o+12}")
        for f in pre: f()
        a("s_waitcnt lgkmcnt(0)")
        stamp(4)
        a(f"""
        v_add_f32 v{BA[0]}, v{BA[0]}, v{BA[0]+1}
        v_add_f32 v{BA[0]+2}, v{BA[0]+2}, v{BA[0]+3}
        s_mov_b32 s76, 1
        v_add_f32 v{BA[0]}, v{BA[0]}, v{BA[0]+2}
        s_cmp_eq_u32 s3, 0
        v_cvt_pk_bf16_f32 v{T0}, v{BA[0]}, v{BA[0]}
        s_cbranch_scc0 L_notick{name}
        s_atomic_add s76, s[74:75], 0x0 glc
        L_notick{name}:
        s_nop 0
        """)
        OB = QB; OD = BIG
        selB(OB, T0, 0)
        order = [(t, G) for t in range(6) for G in range(5)] + [(t, G) for G in range(5) for t in (6, 7)]
        pend = [(t, r) for t in range(1, 8) for r in range(4)]
        a("s_nop 1")
        lastm = {}
        wr = 0
        for n, (t, G) in enumerate(order):
            c = "0" if t == 0 else vr(OD + 4 * G)
            a(f"v_mfma_f32_16x16x32_bf16 {vr(OD+4*G)}, {ar(4*(5*t+G))}, {vr(OB+4*t)}, {c}")
            if pend and not (n % 5 >= 3 and pend[0][0] == t + 1):
                k = 2 if (n % 5 == 0 and n < 5) or pend[0][0] == t + 1 else 1
                for _ in range(k):
                    if pend:
                        tt, r = pend.pop(0)
                        a(f"v_and_b32_dpp v{OB+4*tt+r}, v{T0}, v{M+r} row_newbcast:{tt} {DPPF}")
        assert not pend
        a(f"ds_write_b128 v{T2}, {vr(OD)} offset:{L_OP}")
        a("s_nop 0")
        a(f"ds_write_b128 v{T2}, {vr(OD+4)} offset:{L_OP+1024}")
        a("s_nop 0")
        a(f"ds_write_b128 v{T2}, {vr(OD+8)} offset:{L_OP+2048}")
        a("s_nop 0")
        a(f"ds_write_b128 v{T2}, {vr(OD+12)} offset:{L_OP+3072}")
        a("s_nop 0")
        a(f"ds_write_b128 v{T2}, {vr(OD+16)} offset:{L_OP+4096}")
        a(f"""
        s_waitcnt lgkmcnt(0)
        s_cmp_eq_u32 s76, 31
        s_cbranch_scc0 L_noflag{name}
        v_lshlrev_b32 v{T0}, 8, v{LANE}
        v_mov_b32 v{T1}, 1
        s_lshl_b32 s7, s70, 2
        s_add_u32 s7, s7, {FLAGS}
        s_mov_b64 exec, 0xffff
        buffer_store_dword v{T1}, v{T0}, s[28:31], s7 offen sc1
        s_mov_b64 exec, -1
        L_noflag{name}:
        s_barrier
        """)
        a.vm.append("maybe")
        o = L_OP // 256
        R = QB
        for k in range(4):
            a(f"ds_read2st64_b32 v[{R+4*k}:{R+4*k+1}], v{AOP+k} offset0:{o} offset1:{o+20}")
            a(f"ds_read2st64_b32 v[{R+4*k+2}:{R+4*k+3}], v{AOP+k} offset0:{o+40} offset1:{o+60}")
        for k in range(4):
            if k == 3:
                a(f"s_cmp_ge_u32 s3, 2\ns_cbranch_scc1 L_no3{name}")
            a(f"s_waitcnt lgkmcnt({6-2*k})")
            a(f"v_add_f32 v{R+4*k}, v{R+4*k}, v{R+4*k+1}\nv_add_f32 v{R+4*k+2}, v{R+4*k+2}, v{R+4*k+3}\nv_add_f32 v{R+4*k}, v{R+4*k}, v{R+4*k+2}")
            a(f"v_cndmask_b32 v{R+4*k}, v{R+4*k}, 1.0, s[68:69]")
            a(f"buffer_atomic_add_f32 v{R+4*k}, v{AAT}, s[28:31], s67 offen offset:{ACC1 + k*1024}")
        a(f"L_no3{name}:")
        a("s_waitcnt lgkmcnt(0)")
        stamp(5)

    def transpose(src, dst):
        for t in range(4):
            for p in range(4):
                sel = "s78" if t & 1 else "s79"
                a(f"v_perm_b32 v{dst+4*t+p}, v{src+2*(2*p+1)+(t>>1)}, v{src+2*(2*p)+(t>>1)}, {sel}")

    def write_stamps():
        if stamps:
            a("s_waitcnt vmcnt(0)")
            stamp(9)
            a("s_waitcnt lgkmcnt(0)")
            for i in range(10):
                a(f"v_mov_b32 v{BIG+i}, s{80+2*i}")
            a(f"s_getreg_b32 s7, hwreg(HW_REG_XCC_ID)\nv_mov_b32 v{BIG+10}, s7\nv_mov_b32 v{BIG+11}, s79")
            a(f"s_lshl_b32 s7, s2, 2\ns_add_u32 s7, s7, s3\ns_lshl_b32 s7, s7, 6\ns_add_u32 s7, s7, {STAMP}\nv_mov_b32 v{T0}, s7")
            for i in range(3):
                a(f"global_store_dwordx4 v{T0}, {vr(BIG+4*i)}, s[62:63] offset:{16*i}")

    att_tail("N", [])
    if stamps:
        a("s_mov_b32 s92, 0\ns_mov_b32 s94, 0\ns_mov_b32 s96, 0\ns_mov_b32 s79, 0")
    write_stamps()
    a("s_endpgm")

    a("L_roleG:")
    a(f"""
    s_lshr_b32 s7, s71, 1
    s_add_u32 s73, s73, s7
    s_and_b32 s77, s71, 1
    s_cmp_eq_u32 s77, 0
    s_cselect_b32 s32, s52, s54
    s_cselect_b32 s33, s53, s55
    s_mov_b32 s34, {640*3456}
    s_mov_b32 s35, 0x20000
    v_lshrrev_b32 v{T1}, 4, v{LANE}
    v_mul_u32_u24 v{T1}, {8*3456}, v{T1}
    v_and_b32 v{T0}, 15, v0
    v_lshl_add_u32 v{T1}, v{T0}, 3, v{T1}
    s_mul_i32 s7, s3, {160*3456}
    s_lshl_b32 s65, s73, 7
    s_add_u32 s7, s7, s65
    v_add_u32 v{WOFF}, s7, v{T1}
    """)
    def ldG(n):
        s, jj = n // 8, n % 8
        def f():
            a(f"s_mov_b32 s65, {(32*s+jj)*3456}")
            a.vmem(f"buffer_load_dwordx2 {vr(RAW+2*n, 2)}, v{WOFF}, s[32:35], s65 offen nt", ("g", n))
        return f
    att_tail("G", [ldG(n) for n in range(16)])
    for n in range(16, 40):
        ldG(n)()
    XR = QB
    AX, AA, AH, AF, AG = 2, 3, 4, 5, 12
    a(f"""
    v_lshrrev_b32 v{T0}, 5, v0
    v_and_b32 v{T1}, 31, v0
    v_mul_u32_u24 v{T2}, 40, v{T1}
    v_mul_u32_u24 v{AX}, 1280, v{T0}
    v_add_u32 v{AX}, v{AX}, v{T2}
    v_mul_u32_u24 v{AH}, {HN_STR}, v{T0}
    v_add_u32 v{AH}, v{AH}, v{T2}
    v_mul_u32_u24 v{AA}, {ACC1_B}, v{T0}
    v_lshl_add_u32 v{AA}, v{T1}, 4, v{AA}
    """)
    for i in range(5):
        a.vmem(f"buffer_load_dwordx2 {vr(XR+2*i, 2)}, v{AX}, s[24:27], 0 offen offset:{8*i}", "xr")
    a(f"""
    v_and_b32 v{T0}, 7, v0
    v_mul_u32_u24 v{AF}, {HN_STR}, v{T0}
    v_lshrrev_b32 v{T1}, 4, v{LANE}
    v_lshl_add_u32 v{AF}, v{T1}, 4, v{AF}
    s_mul_i32 s7, s3, 320
    v_add_u32 v{AF}, s7, v{AF}
    v_bfe_u32 v{T0}, v0, 5, 1
    v_lshlrev_b32 v{T0}, 3, v{T0}
    s_lshl_b32 s7, s3, 1
    v_bfe_u32 v{T1}, v0, 1, 1
    v_add3_u32 v{T0}, v{T0}, s7, v{T1}
    v_bfe_u32 v{T1}, v0, 4, 1
    v_lshl_add_u32 v{T0}, v{T1}, 4, v{T0}
    v_lshlrev_b32 v{T0}, 4, v{T0}
    v_and_b32 v{T1}, 12, v0
    v_add_u32 v{T0}, v{T0}, v{T1}
    v_and_b32 v{T1}, 1, v0
    v_lshl_add_u32 v{AG}, v{T1}, 11, v{T0}
    s_lshl_b32 s7, s3, 12
    v_add_u32 v13, s7, v{AL16}
    s_mov_b32 s78, 0x07060302
    s_mov_b32 s79, 0x05040100
    v_and_b32 v14, 7, v0
    v_lshlrev_b32 v14, 2, v14
    s_mul_i32 s76, s77, 27
    s_add_u32 s76, s76, s73
    s_and_b32 s7, {'s76' if fpoll == 's' else 's2'}, 15
    s_lshl_b32 s7, s7, 8
    s_add_u32 s7, s7, {FLAGS}
    s_add_u32 s74, s62, s7
    s_addc_u32 s75, s63, 0
    s_lshl_b32 s76, s76, 10
    s_add_u32 s76, s76, {SU}
    """)
    WT = RING
    younger = 24 + 5
    a(f"s_waitcnt vmcnt({younger})")
    transpose(RAW, WT); transpose(RAW + 16, WT + 16)
    for s in range(2, 5):
        a(f"s_waitcnt vmcnt({(4-s)*8+5})")
        transpose(RAW + 16 * s, WT + 16 * s)
    a("s_waitcnt vmcnt(0)")
    a.vm = []
    XF = RAW + 32
    for i in range(10):
        a(f"v_lshlrev_b32 v{XF+2*i}, 16, v{XR+i}\nv_and_b32 v{XF+2*i+1}, 0xffff0000, v{XR+i}")
    AC = RAW
    a("s_mov_b32 s79, 0")
    a(f"s_mov_b32 s66, {1 if dry else 0}")
    if dry:
        a("s_branch L_Gbody")
    if fpoll == 's':
        POLL = """s_load_dwordx8 s[40:47], s[74:75], 0x0 glc
        s_waitcnt lgkmcnt(0)
        s_and_b32 s40, s40, s41
        s_and_b32 s42, s42, s43
        s_and_b32 s44, s44, s45
        s_and_b32 s46, s46, s47
        s_and_b32 s40, s40, s42
        s_and_b32 s44, s44, s46
        s_and_b32 s40, s40, s44
        s_cbranch_scc0 L_Gpoll"""
    else:
        POLL = f"""global_load_dword v{T1}, v14, s[74:75] sc1
        s_waitcnt vmcnt(0)
        v_cmp_eq_u32 vcc, 0, v{T1}
        s_cbranch_vccnz L_Gpoll"""
    a("L_Gwait:")
    a(f"""
    s_cmp_eq_u32 s3, 0
    s_cbranch_scc0 L_Gbar
    L_Gpoll:
    {spin()}
    {POLL}
    L_Gbar:
    s_barrier
    """)
    stamp(6)
    a("L_Gread:")
    a(spin())
    for i in range(7):
        a(f"buffer_load_dwordx4 {vr(AC+4*i)}, v{AA}, s[28:31], 0 offen offset:{ACC1 + 512*i} sc1")
    if stamps:
        a("s_add_u32 s79, s79, 1")
    a(f"""
    s_waitcnt vmcnt(0)
    v_min3_f32 v{T0}, v{AC+3}, v{AC+7}, v{AC+11}
    v_min3_f32 v{T1}, v{AC+15}, v{AC+19}, v{AC+23}
    v_min3_f32 v{T0}, v{T0}, v{T1}, v{AC+27}
    v_cmp_neq_f32 vcc, 0x42000000, v{T0}
    s_cbranch_vccnz L_Gread
    """)
    stamp(7)
    a("L_Gbody:")
    H = RAW + 52
    val = [AC + 4 * (e // 3) + e % 3 for e in range(20)]
    for i in range(10):
        a(f"v_cvt_pk_bf16_f32 v{T0}, v{val[2*i]}, v{val[2*i+1]}")
        a(f"v_lshlrev_b32 v{H+2*i}, 16, v{T0}\nv_and_b32 v{H+2*i+1}, 0xffff0000, v{T0}")
        a(f"v_pk_add_f32 {vr(H+2*i,2)}, {vr(H+2*i,2)}, {vr(XF+2*i,2)}")
        a(f"v_cvt_pk_bf16_f32 v{T0}, v{H+2*i}, v{H+2*i+1}")
        a(f"v_lshlrev_b32 v{H+2*i}, 16, v{T0}\nv_and_b32 v{H+2*i+1}, 0xffff0000, v{T0}")
        if i == 1:
            a(f"v_pk_add_f32 {vr(TT,2)}, {vr(H,2)}, {vr(H+2,2)}")
        elif i > 1:
            a(f"v_pk_add_f32 {vr(TT,2)}, {vr(TT,2)}, {vr(H+2*i,2)}")
    a(f"v_add_f32 v{TT}, v{TT}, v{TT+1}")
    allreduce(a, "v_add_f32", TT, TT + 1, rows=2)
    a(f"v_mul_f32 v{TT}, 0xbacccccd, v{TT}")
    rbf(a, TT + 2, TT)
    for i in range(10):
        a(f"v_pk_add_f32 {vr(TT+4,2)}, {vr(H+2*i,2)}, {vr(TT,2)} op_sel_hi:[1,0]")
        if i == 0:
            a(f"v_pk_mul_f32 {vr(TT+6,2)}, {vr(TT+4,2)}, {vr(TT+4,2)}")
        else:
            a(f"v_pk_fma_f32 {vr(TT+6,2)}, {vr(TT+4,2)}, {vr(TT+4,2)}, {vr(TT+6,2)}")
    a(f"v_add_f32 v{TT+6}, v{TT+6}, v{TT+7}")
    steps = ["quad_perm:[1,0,3,2]", "quad_perm:[2,3,0,1]", "row_half_mirror", "row_mirror"]
    for i in range(10):
        a(f"v_pk_add_f32 {vr(H+2*i,2)}, {vr(H+2*i,2)}, {vr(TT+2,2)} op_sel_hi:[1,0]")
        a(f"v_cvt_pk_bf16_f32 v{T0}, v{H+2*i}, v{H+2*i+1}")
        a(f"v_lshlrev_b32 v{H+2*i}, 16, v{T0}\nv_and_b32 v{H+2*i+1}, 0xffff0000, v{T0}")
        V_ = TT + 6
        if i < 4:
            a(f"v_add_f32_dpp v{V_}, v{V_}, v{V_} {steps[i]} {DPPF}")
            if i == 3:
                a(f"v_mov_b32 v{V_+1}, v{V_}")
        elif i == 4:
            a(f"v_permlane16_swap_b32 v{V_}, v{V_+1}")
        elif i == 5:
            a(f"v_add_f32 v{V_}, v{V_}, v{V_+1}\nv_mul_f32 v{V_}, 0x3acccccd, v{V_}")
            rbf(a, V_, V_)
            a(f"v_add_f32 v{V_}, 0x3727c5ac, v{V_}")
            rbf(a, V_, V_)
            a(f"v_sqrt_f32 v{V_}, v{V_}")
        elif i == 6:
            rbf(a, V_, V_)
            a(f"v_rcp_f32 v{V_}, v{V_}")
    HP = AC
    for i in range(10):
        a(f"v_pk_mul_f32 {vr(H+2*i,2)}, {vr(H+2*i,2)}, {vr(TT+6,2)} op_sel_hi:[1,0]")
        a(f"v_cvt_pk_bf16_f32 v{HP+i}, v{H+2*i}, v{H+2*i+1}")
        if i & 1:
            a(f"ds_write_b64 v{AH}, {vr(HP+i-1,2)} offset:{L_HN + 4*(i-1)}")
    a("s_waitcnt lgkmcnt(0)\ns_barrier")
    FA = BIG
    for s in range(5):
        a(f"ds_read_b128 {vr(FA+4*s)}, v{AF} offset:{L_HN + 64*s}")
    GD = QB
    for s in range(5):
        a(f"s_waitcnt lgkmcnt({4-s})")
        for t in range(4):
            c = "0" if s == 0 else vr(GD + 4 * t)
            a(f"v_mfma_f32_16x16x32_bf16 {vr(GD+4*t)}, {vr(FA+4*s)}, {vr(WT+16*s+4*t)}, {c}")
    a("s_nop 4")
    for t in range(4):
        a(f"ds_write_b128 v13, {vr(GD+4*t)} offset:{L_GP + 1024*t}")
    a("s_waitcnt lgkmcnt(0)\ns_barrier")
    o = L_GP // 256
    for w in range(4):
        a(f"ds_read2st64_b32 {vr(FA+2*w,2)}, v{AG} offset0:{o+16*w} offset1:{o+16*w+4}")
    a(f"""
    s_cmp_eq_u32 s77, 0
    s_waitcnt lgkmcnt(2)
    v_pk_add_f32 {vr(FA,2)}, {vr(FA,2)}, {vr(FA+2,2)}
    s_waitcnt lgkmcnt(0)
    v_pk_add_f32 {vr(FA+4,2)}, {vr(FA+4,2)}, {vr(FA+6,2)}
    v_pk_add_f32 {vr(FA,2)}, {vr(FA,2)}, {vr(FA+4,2)}
    v_cvt_pk_bf16_f32 v{T0}, v{FA}, v{FA+1}
    s_cbranch_scc0 L_Gup
    v_lshlrev_b32 v{FA}, 16, v{T0}
    v_and_b32 v{FA+1}, 0xffff0000, v{T0}
    v_mul_f32 v{FA}, 0xbfb8aa3b, v{FA}
    v_mul_f32 v{FA+1}, 0xbfb8aa3b, v{FA+1}
    v_exp_f32 v{FA}, v{FA}
    v_exp_f32 v{FA+1}, v{FA+1}
    s_nop 0
    v_add_f32 v{FA}, 1.0, v{FA}
    v_add_f32 v{FA+1}, 1.0, v{FA+1}
    v_rcp_f32 v{FA}, v{FA}
    v_rcp_f32 v{FA+1}, v{FA+1}
    s_nop 0
    v_cvt_pk_bf16_f32 v{T0}, v{FA}, v{FA+1}
    L_Gup:
    v_min_u32 v{T0}, -2, v{T0}
    s_cmp_eq_u32 s66, 0
    s_mov_b32 s66, 0
    s_cbranch_scc0 L_Gwait
    buffer_store_dword v{T0}, v{AAT}, s[28:31], s76 offen
    """)
    stamp(8)
    a(f"""
    s_waitcnt vmcnt(0)
    {'s_sleep %d' % slp if slp else ''}
    buffer_store_dword v{T0}, v{AAT}, s[28:31], s76 offen sc1
    """)
    write_stamps()
    a("s_endpgm")

    a("L_roleD:")
    a(f"""
    s_mov_b32 s32, s56
    s_mov_b32 s33, s57
    s_mov_b32 s34, {1728*1280}
    s_mov_b32 s35, 0x20000
    v_lshrrev_b32 v{T1}, 4, v{LANE}
    v_mul_u32_u24 v{T1}, {8*1280}, v{T1}
    v_and_b32 v{T0}, 15, v0
    v_lshl_add_u32 v{T1}, v{T0}, 3, v{T1}
    s_add_u32 s73, s73, s3
    s_mul_i32 s7, s73, {64*1280}
    s_lshl_b32 s65, s77, 7
    s_add_u32 s7, s7, s65
    s_cmp_lt_u32 s3, s72
    s_cselect_b32 s7, s7, 0x1000000
    v_add_u32 v{WOFF}, s7, v{T1}
    """)
    def ldD(n):
        s, jj = n // 8, n % 8
        def f():
            a(f"s_mov_b32 s65, {(32*s+jj)*1280}")
            a.vmem(f"buffer_load_dwordx2 {vr(RAW+2*n, 2)}, v{WOFF}, s[32:35], s65 offen nt", ("d", n))
        return f
    att_tail("D", [ldD(n) for n in range(16)])
    AD, AO, AA1 = 2, 5, 12
    XD = 92
    a(f"""
    v_lshrrev_b32 v{T0}, 2, v0
    v_mul_u32_u24 v{T0}, 3, v{T0}
    v_and_b32 v{T1}, 3, v0
    v_min_u32 v{T1}, 2, v{T1}
    v_add_u32 v{T0}, v{T0}, v{T1}
    v_lshrrev_b32 v{T1}, 6, v{T0}
    v_and_b32 v{T0}, 63, v{T0}
    v_and_b32 v{T2}, 3, v{T0}
    v_lshlrev_b32 v{T2}, 10, v{T2}
    v_lshrrev_b32 v{TT}, 2, v{T0}
    v_lshl_add_u32 v{T2}, v{TT}, 4, v{T2}
    """)
    for k in range(3):
        a(f"""
        v_add_u32 v{TT}, {3*k}, v{T1}
        v_lshrrev_b32 v{TT+1}, 2, v{TT}
        v_lshl_add_u32 v{TT+1}, v{TT+1}, 8, v{T2}
        v_and_b32 v{TT}, 3, v{TT}
        v_lshl_add_u32 v{AD+k}, v{TT}, 2, v{TT+1}
        """)
    a(f"""
    s_lshl_b32 s7, s77, 6
    v_add_u32 v{T0}, s7, v{T0}
    v_mul_u32_u24 v{AO}, 640, v{T1}
    v_add_lshl_u32 v{AO}, v{AO}, v{T0}, 1
    v_mul_u32_u24 v{TT}, 3277, v{T0}
    v_lshrrev_b32 v{TT}, 16, v{TT}
    v_mul_u32_u24 v{TT+1}, 20, v{TT}
    v_sub_u32 v{TT+1}, v{T0}, v{TT+1}
    v_mul_u32_u24 v{TT+2}, 86, v{TT+1}
    v_lshrrev_b32 v{TT+2}, 8, v{TT+2}
    v_mul_u32_u24 v{TT+3}, 3, v{TT+2}
    v_sub_u32 v{TT+3}, v{TT+1}, v{TT+3}
    v_lshl_add_u32 v{TT}, v{TT+2}, 5, v{TT}
    v_lshlrev_b32 v{TT}, 4, v{TT}
    v_lshl_add_u32 v{TT}, v{TT+3}, 2, v{TT}
    v_mul_u32_u24 v{AA1}, {ACC1_B}, v{T1}
    v_add_u32 v{AA1}, v{AA1}, v{TT}
    s_lshl_b32 s7, s3, 12
    v_add_u32 v13, s7, v{AL16}
    s_mov_b32 s78, 0x07060302
    s_mov_b32 s79, 0x05040100
    s_lshl_b32 s76, s73, 10
    s_add_u32 s76, s76, {SU}
    s_add_u32 s74, s76, {27*1024}
    s_mul_i32 s75, s77, 3072
    s_add_u32 s75, s75, {ACC3}
    s_mov_b32 s40, {3*1280}
    s_mov_b32 s41, {6*1280}
    s_mov_b32 s42, {3*ACC1_B}
    s_mov_b32 s43, {6*ACC1_B}
    v_cmp_gt_u32 s[44:45], 0xac, v0
    """.replace("v_cmp_gt_u32 s[44:45], 0xac, v0", "v_cmp_gt_u32 vcc, 0xac, v0\ns_mov_b64 s[44:45], vcc\nv_cmp_gt_u32 vcc, 0xaa, v0\ns_mov_b64 s[52:53], vcc\nv_or_b32 v14, 12, v12"))
    for k in range(3):
        so = ["0", "s40", "s41"][k]
        a(f"buffer_load_ushort v{XD+k}, v{AO}, s[24:27], {so} offen")
    a("s_waitcnt vmcnt(0)")
    a.vm = []
    WT = RING
    transpose(RAW, WT); transpose(RAW + 16, WT + 16)
    for k in range(3):
        a(f"v_lshlrev_b32 v{XD+k}, 16, v{XD+k}")
    SG, UU = BIG, BIG + 4
    a("s_mov_b32 s79, 0")
    a(f"s_mov_b32 s66, {1 if dry else 0}")
    for j in range(8):
        a(f"v_mov_b32 v{SG+j}, 0")
    if dry:
        a("s_branch L_Dbody")
    a("L_Dwait:")
    stamp(6)
    a(f"""
    s_cmp_lt_u32 s3, s72
    s_cbranch_scc0 L_Dbody
    L_Dpoll:
    {spin()}
    buffer_load_dwordx4 {vr(SG)}, v{AL16}, s[28:31], s76 offen sc1
    buffer_load_dwordx4 {vr(UU)}, v{AL16}, s[28:31], s74 offen sc1
    s_waitcnt vmcnt(0)
    v_max3_u32 v{T0}, v{SG}, v{SG+1}, v{SG+2}
    v_max3_u32 v{T1}, v{SG+3}, v{UU}, v{UU+1}
    v_max3_u32 v{T0}, v{T0}, v{UU+2}, v{UU+3}
    v_max_u32 v{T0}, v{T0}, v{T1}
    v_cmp_eq_u32 vcc, -1, v{T0}
    s_cbranch_vccnz L_Dpoll
    """)
    a("L_Dbody:")
    stamp(7)
    HA = BIG + 8; HB = BIG + 12
    for j in range(4):
        a(f"""
        v_lshlrev_b32 v{TT}, 16, v{SG+j}
        v_and_b32 v{TT+1}, 0xffff0000, v{SG+j}
        v_lshlrev_b32 v{TT+2}, 16, v{UU+j}
        v_and_b32 v{TT+3}, 0xffff0000, v{UU+j}
        v_pk_mul_f32 {vr(TT,2)}, {vr(TT,2)}, {vr(TT+2,2)}
        v_cvt_pk_bf16_f32 v{HA+j}, v{TT}, v{TT+1}
        """)
    for j in range(3):
        a(f"v_mov_b32_dpp v{HB+j}, v{HA+j} row_ror:8 {DPPF}")
    a(f"v_mov_b32_dpp v{HB+3}, v{HA+3} row_ror:8 {DPPF}")
    GD = QB
    for s in range(2):
        for t in range(4):
            c = "0" if s == 0 else vr(GD + 4 * t)
            a(f"v_mfma_f32_16x16x32_bf16 {vr(GD+4*t)}, {vr(HB if s else HA)}, {vr(WT+16*s+4*t)}, {c}")
    a("s_nop 4")
    for t in range(4):
        a(f"ds_write_b128 v13, {vr(GD+4*t)} offset:{L_GP + 1024*t}")
    a("s_waitcnt lgkmcnt(0)\ns_barrier")
    R = RAW
    for k in range(3):
        a(f"ds_read2st64_b32 {vr(R+4*k,2)}, v{AD+k} offset0:{o} offset1:{o+16}")
        a(f"ds_read2st64_b32 {vr(R+4*k+2,2)}, v{AD+k} offset0:{o+32} offset1:{o+48}")
    for k in range(3):
        a(f"s_waitcnt lgkmcnt({4-2*k})")
        a(f"v_add_f32 v{R+4*k}, v{R+4*k}, v{R+4*k+1}\nv_add_f32 v{R+4*k+2}, v{R+4*k+2}, v{R+4*k+3}\nv_add_f32 v{R+4*k}, v{R+4*k}, v{R+4*k+2}")
        a(f"v_cndmask_b32 v{R+4*k+1}, v{R+4*k}, 1.0, s[68:69]")
    a(f"""
    s_cmp_eq_u32 s66, 0
    s_cbranch_scc0 L_Dskip
    buffer_atomic_add_f32 v{R+1}, v{AAT}, s[28:31], s75 offen sc0
    buffer_atomic_add_f32 v{R+5}, v{AAT}, s[28:31], s75 offen offset:1024 sc0
    s_cmp_ge_u32 s3, 3
    s_cbranch_scc1 L_Dno2
    s_mov_b64 exec, s[44:45]
    buffer_atomic_add_f32 v{R+9}, v{AAT}, s[28:31], s75 offen offset:2048 sc0
    s_mov_b64 exec, -1
    L_Dno2:
    {spin()}
    buffer_load_dword v{R+3}, v14, s[28:31], 0 offen sc1
    buffer_load_dword v{R+7}, v14, s[28:31], s42 offen sc1
    buffer_load_dword v{R+11}, v14, s[28:31], s43 offen sc1
    buffer_load_dword v{R+2}, v{AA1}, s[28:31], 0 offen sc1
    buffer_load_dword v{R+6}, v{AA1}, s[28:31], s42 offen sc1
    buffer_load_dword v{R+10}, v{AA1}, s[28:31], s43 offen sc1
    s_waitcnt vmcnt(0)
    v_cndmask_b32 v{R+11}, v{R+7}, v{R+11}, s[52:53]
    v_min3_f32 v{R+3}, v{R+3}, v{R+7}, v{R+11}
    v_cmp_neq_f32 vcc, 0x42000000, v{R+3}
    s_cbranch_vccnz L_Dno2
    L_Dskip:
    """)
    stamp(8)
    for k in range(3):
        r = R + 4 * k
        a(f"""
        v_mov_b32_dpp v{r+3}, v{r+1} quad_perm:[3,3,3,3] {DPPF}
        v_add_f32 v{r}, v{r}, v{r+1}
        v_cvt_pk_bf16_f32 v{r}, v{r+2}, v{r}
        v_lshlrev_b32 v{r+2}, 16, v{r}
        v_and_b32 v{r}, 0xffff0000, v{r}
        v_add_f32 v{r+2}, v{r+2}, v{XD+k}
        v_cvt_pk_bf16_f32 v{r+2}, v{r+2}, v{r+2}
        v_and_b32 v{r+2}, 0xffff0000, v{r+2}
        v_add_f32 v{r}, v{r}, v{r+2}
        v_cvt_pk_bf16_f32 v{r}, v{r}, v{r}
        v_cmp_eq_f32 vcc, 0x40e00000, v{r+3}
        s_andn2_b64 s[{46+2*k}:{47+2*k}], vcc, s[68:69]
        """)
    a(f"""
    s_cmp_eq_u32 s66, 0
    s_mov_b32 s66, 0
    s_cbranch_scc1 L_Dstore
    s_barrier
    s_branch L_Dwait
    L_Dstore:
    s_and_b64 s[50:51], s[50:51], s[52:53]
    """)
    for k in range(3):
        so = ["0", "s40", "s41"][k]
        a(f"""
        s_mov_b64 exec, s[{46+2*k}:{47+2*k}]
        s_cbranch_execz L_Dns{k}
        buffer_store_short v{R+4*k}, v{AO}, s[36:39], {so} offen
        L_Dns{k}:
        """)
    a("s_mov_b64 exec, -1")
    write_stamps()
    a("L_end:")
    a("s_endpgm")

    head = open("sequential_preLN__sliding_block_cached__glu_gated_glu__decode.s.ref").read().split("; Override launch")[0]
    out = head + f"; @launch grid=(256,1,1) block=(256,1,1) lds={LDS_BYTES}\n"
    out += '.amdgcn_target "amdgcn-amd-amdhsa--gfx950"\n.text\n'
    out += f".globl {KN}\n.p2align 8\n.type {KN},@function\n{KN}:\n"
    out += "\n".join(a.L) + "\n"
    out += f""".section .rodata,"a"
.p2align 6
.amdhsa_kernel {KN}
  .amdhsa_next_free_vgpr 512
  .amdhsa_next_free_sgpr 102
  .amdhsa_accum_offset 256
  .amdhsa_group_segment_fixed_size 0
  .amdhsa_kernarg_size 96
  .amdhsa_user_sgpr_count 2
  .amdhsa_user_sgpr_kernarg_segment_ptr 1
  .amdhsa_system_sgpr_workgroup_id_x 1
  .amdhsa_float_denorm_mode_32 3
.end_amdhsa_kernel
"""
    return out

if __name__ == "__main__":
    kw = {}
    for x in sys.argv[2:]:
        k, v = x.split("=")
        kw[k] = eval(v)
    open(sys.argv[1], "w").write(gen(**kw))
```

```python
import sys, copy
KN = "sequential_preLN__sliding_block_cached__glu_gated_glu__decode_kernel"

ACC1 = 0
ACC1_B = 3584
ACC3 = 28672
FLAGS = 59392
TICK = FLAGS + 4096
SU = 69632
WS_USED = 31 * 4096
STAMP = 1 << 20

L_Q = 0
L_ML = 4096
L_PV = 5120
L_OP = 9216
L_HN = 30720
HN_STR = 1312
L_GP = 41472
LDS_BYTES = 57856

class Asm:
    def __init__(self):
        self.L = []
        self.vm = []
    def __call__(self, s):
        for x in s.split("\n"):
            x = x.strip()
            if x:
                self.L.append(x if x.endswith(":") else "  " + x)
    def vmem(self, s, tag=None):
        self(s)
        self.vm.append(tag)
        assert len(self.vm) <= 63, "too many outstanding vmem"
    def need(self, tag):
        if tag in self.vm:
            i = len(self.vm) - 1 - self.vm[::-1].index(tag)
            n = len(self.vm) - 1 - i
            self(f"s_waitcnt vmcnt({n})")
            self.vm = self.vm[i + 1:]
    def window(self, n):
        if len(self.vm) > n:
            self(f"s_waitcnt vmcnt({n})")
            self.vm = self.vm[len(self.vm) - n:] if n else []

def vr(b, n=4): return f"v[{b}:{b+n-1}]"
def ar(b, n=4): return f"a[{b}:{b+n-1}]"
DPPF = "row_mask:0xf bank_mask:0xf"

def allreduce(a, op, v, t, rows=4):
    for c in ["quad_perm:[1,0,3,2]", "quad_perm:[2,3,0,1]", "row_half_mirror", "row_mirror"]:
        a("s_nop 1")
        a(f"{op}_dpp v{v}, v{v}, v{v} {c} {DPPF}")
    a(f"v_mov_b32 v{t}, v{v}")
    a("s_nop 1")
    a(f"v_permlane16_swap_b32 v{v}, v{t}")
    a("s_nop 0")
    a(f"{op} v{v}, v{v}, v{t}")
    if rows == 4:
        a(f"v_mov_b32 v{t}, v{v}")
        a("s_nop 1")
        a(f"v_permlane32_swap_b32 v{v}, v{t}")
        a("s_nop 0")
        a(f"{op} v{v}, v{v}, v{t}")

def rbf(a, d, s):
    a(f"v_cvt_pk_bf16_f32 v{d}, v{s}, v{s}")
    a(f"v_and_b32 v{d}, 0xffff0000, v{d}")

def mixseq(main, extra, upto=None, skip=0):
    upto = len(main) if upto is None else upto
    seq = list(main[:skip]); acc = 0.0; ri = 0
    for x in main[skip:upto]:
        acc += len(extra) / (upto - skip)
        while acc >= 1.0 - 1e-9 and ri < len(extra):
            seq.append(extra[ri]); ri += 1; acc -= 1.0
        seq.append(x)
    return seq + extra[ri:] + list(main[upto:])

def gen(rot=16, W=10, stamps=False, wq_upto=54, dry=True, tailW=8, bound=200000, slp=6, fpoll='v', kf='nt', vf='nt', wf='nt', ff='nt'):
    a = Asm()
    def spin():
        return f"s_add_u32 s100, s100, 1\ns_cmp_gt_u32 s100, {bound}\ns_cbranch_scc1 L_end\n" if bound else ''
    LANE, KOFF, VOFF, QOFF, OOFF = 1, 2, 3, 4, 5
    T0, T1 = 6, 7
    M = 8
    XN = 12
    T2 = 15
    BA = [16, 20]
    D = [24, 28]
    QB = 32
    P = 48
    TT = 52
    BIG = 64
    RING = 96; NRING = 20
    NQR = 12
    RAW = 176
    APV, AOP, AAT, AL16 = 84, 85, 89, 90
    WOFF = 91
    def stamp(i):
        if stamps:
            a(f"s_memrealtime s[{80+2*i}:{81+2*i}]")

    a(f"s_cmp_ge_u32 s2, 256\ns_cbranch_scc1 L_end")
    a("s_load_dwordx16 s[40:55], s[0:1], 0")
    a("s_load_dwordx8 s[56:63], s[0:1], 64")
    a("s_mov_b32 s100, 0")
    stamp(0)
    a(f"""
    v_lshrrev_b32 v{T0}, 6, v0
    v_and_b32 v{LANE}, 63, v0
    v_readfirstlane_b32 s3, v{T0}
    v_lshrrev_b32 v{T1}, 4, v{LANE}
    v_and_b32 v{T2}, 15, v0
    v_lshlrev_b32 v{VOFF}, 4, v0
    v_and_b32 v{TT}, 3, v0
    v_lshl_add_u32 v{TT}, v{T1}, 2, v{TT}
    v_lshlrev_b32 v{TT}, 4, v{TT}
    v_lshl_add_u32 v{TT}, v{T0}, 10, v{TT}
    v_bfe_u32 v{TT+1}, v0, 2, 2
    v_lshl_add_u32 v{KOFF}, v{TT+1}, 8, v{TT}
    v_mul_u32_u24 v{TT}, 160, v{T0}
    v_add_u32 v{TT}, v{TT}, v{T1}
    v_lshlrev_b32 v{TT+1}, 4, v{T2}
    v_lshl_add_u32 v{QOFF}, v{TT}, 13, v{TT+1}
    v_lshl_add_u32 v{TT+2}, v{T2}, 2, v{TT}
    v_lshlrev_b32 v{TT+2}, 1, v{TT+2}
    v_lshlrev_b32 v{AL16}, 4, v{LANE}
    v_lshlrev_b32 v{TT+3}, 2, v{LANE}
    s_and_b32 s4, s2, 31
    s_lshr_b32 s5, s2, 5
    s_lshl_b32 s6, s2, 20
    s_add_u32 s6, s6, 0xC0000
    s_mul_i32 s64, s2, {rot*1024}
    s_and_b32 s64, s64, 0x3ffff
    s_mul_i32 s66, s5, 1280
    s_lshl_b32 s7, s4, 8
    s_mov_b32 s10, 0x40000
    s_mov_b32 s11, 0x20000
    s_mov_b32 s14, 0x40000
    s_mov_b32 s15, 0x20000
    s_mov_b32 s26, 10240
    s_mov_b32 s27, 0x20000
    s_sub_u32 s18, {640*8192}, s7
    s_mov_b32 s19, 0x20000
    s_waitcnt lgkmcnt(0)
    s_mov_b32 s24, s40
    s_mov_b32 s25, s41
    s_add_u32 s8, s42, s6
    s_addc_u32 s9, s43, 0
    s_add_u32 s16, s46, s7
    s_addc_u32 s17, s47, 0
    """)
    a.vmem(f"buffer_load_dwordx4 {vr(BIG)}, v{AL16}, s[24:27], s66 offen", "x")
    a.vmem(f"buffer_load_dword v{BIG+4}, v{TT+3}, s[24:27], s66 offen offset:1024", "x")
    for u in range(3):
        a.vmem(f"buffer_load_ushort v{XN+u}, v{TT+2}, s[24:27], s66 offen offset:{u*128}", "x")

    def ldK(i):
        a(f"s_add_u32 s65, s64, {i*4096}\ns_and_b32 s65, s65, 0x3ffff")
        a.vmem(f"buffer_load_dwordx4 {ar(4*i)}, v{KOFF}, s[8:11], s65 offen {kf}", ("k", i))
    st = {"k": 0, "v": 0, "q": 0}
    def ldV(i):
        assert i - st["v"] < NRING and st["q"] == 40
        a(f"s_add_u32 s65, s64, {i*4096}\ns_and_b32 s65, s65, 0x3ffff")
        a.vmem(f"buffer_load_dwordx4 {vr(RING+4*(i%NRING))}, v{VOFF}, s[12:15], s65 offen {vf}", ("v", i))
    def ldQ(t):
        a(f"s_mov_b32 s65, {t*32768}")
        a.vmem(f"buffer_load_dwordx4 {vr(RING+4*(t%NQR))}, v{QOFF}, s[16:19], s65 offen {wf}", ("q", t))
    def ldO(j):
        assert j < st["k"]
        t, G = j // 5, j % 5
        a(f"s_mov_b32 s65, {t*5120}")
        a.vmem(f"buffer_load_dwordx4 {ar(4*j)}, v{OOFF}, s[20:23], s65 offen offset:{G*256} {wf}", ("o", j))
    LD = {"k": ldK, "v": ldV, "q": ldQ, "o": ldO}

    Ks = [("k", i) for i in range(64)]; Qs = [("q", t) for t in range(40)]
    Vs = [("v", i) for i in range(64)]; Os = [("o", j) for j in range(40)]
    seqK = mixseq(Ks, Qs, upto=wq_upto)
    NFIRST = 8
    for x in seqK[:NFIRST]:
        LD[x[0]](x[1])
    a(f"""
    s_add_u32 s12, s44, s6
    s_addc_u32 s13, s45, 0
    s_mul_i32 s7, s4, 163840
    s_add_u32 s20, s48, s7
    s_addc_u32 s21, s49, 0
    s_mov_b32 s22, 163840
    s_mov_b32 s23, 0x20000
    s_mov_b32 s28, s62
    s_mov_b32 s29, s63
    s_mov_b32 s30, {WS_USED}
    s_mov_b32 s31, 0x20000
    s_mov_b32 s36, s58
    s_mov_b32 s37, s59
    s_mov_b32 s38, 10240
    s_mov_b32 s39, 0x20000
    v_lshl_add_u32 v{TT}, v{T0}, 5, v{T1}
    v_mul_u32_u24 v{TT}, 1280, v{TT}
    v_add_u32 v{OOFF}, v{TT}, v{TT+1}
    """)
    a(f"""
    s_cmp_lt_u32 s2, 17
    s_cselect_b32 s7, 0, -1
    s_lshl_b32 s65, s2, 12
    v_mov_b32 v{BIG+8}, s7
    v_mov_b32 v{BIG+9}, s7
    v_mov_b32 v{BIG+10}, s7
    v_mov_b32 v{BIG+11}, s7
    """)
    a.vmem(f"buffer_store_dwordx4 {vr(BIG+8)}, v{VOFF}, s[28:31], s65 offen sc1", "init")
    a(f"""
    v_and_b32 v{TT}, 1, v0
    v_lshlrev_b32 v{TT}, 4, v{TT}
    v_mov_b32 v{TT+1}, 0xffff
    v_lshlrev_b32 v{TT}, v{TT}, v{TT+1}
    v_lshrrev_b32 v{TT+1}, 1, v{T2}
    """)
    for r in range(4):
        a(f"v_cmp_eq_u32 vcc, {r}, v{TT+1}\ns_nop 1\nv_cndmask_b32 v{M+r}, 0, v{TT}, vcc")
    a.need("x")
    X = BIG + 12
    for i in range(5):
        a(f"v_lshlrev_b32 v{X+2*i}, 16, v{BIG+i}\nv_and_b32 v{X+2*i+1}, 0xffff0000, v{BIG+i}")
    a(f"v_add_f32 v{TT}, v{X}, v{X+1}")
    for i in range(2, 10):
        a(f"v_add_f32 v{TT}, v{TT}, v{X+i}")
    allreduce(a, "v_add_f32", TT, TT + 1)
    a(f"v_mul_f32 v{TT}, 0x3acccccd, v{TT}")
    a(f"v_mov_b32 v{TT+2}, 0")
    for i in range(10):
        a(f"v_sub_f32 v{X+i}, v{X+i}, v{TT}\nv_fmac_f32 v{TT+2}, v{X+i}, v{X+i}")
    allreduce(a, "v_add_f32", TT + 2, TT + 1)
    a(f"v_mul_f32 v{TT+2}, 0x3acccccd, v{TT+2}")
    rbf(a, TT, TT)
    rbf(a, TT + 2, TT + 2)
    a(f"v_add_f32 v{TT+2}, 0x3727c5ac, v{TT+2}")
    rbf(a, TT + 2, TT + 2)
    a(f"v_sqrt_f32 v{TT+2}, v{TT+2}\ns_nop 0")
    rbf(a, TT + 2, TT + 2)
    a(f"v_rcp_f32 v{TT+2}, v{TT+2}")
    for u in range(3):
        a(f"v_lshlrev_b32 v{XN+u}, 16, v{XN+u}\nv_sub_f32 v{XN+u}, v{XN+u}, v{TT}")
        rbf(a, XN + u, XN + u)
        a(f"v_mul_f32 v{XN+u}, v{XN+u}, v{TT+2}\nv_cvt_pk_bf16_f32 v{XN+u}, v{XN+u}, v{XN+u}")
    a("s_nop 1")

    def selB(dst, src, lane):
        for r in range(4):
            a(f"v_and_b32_dpp v{dst+r}, v{src}, v{M+r} row_newbcast:{lane} {DPPF}")
    def useQ(t):
        B = BA[t & 1]
        selB(B, XN + (t >> 4), t & 15)
        a.need(("q", t))
        a("s_nop 1")
        c = "0" if t == 0 else vr(D[0])
        a(f"v_mfma_f32_16x16x32_bf16 {vr(D[0])}, {vr(RING+4*(t%NQR))}, {vr(B)}, {c}")
        st["q"] = t + 1

    full = seqK + mixseq(Vs, Os, skip=10, upto=60)
    pos = NFIRST
    qdone = 0
    def issue(n=1):
        nonlocal pos
        for _ in range(n):
            if pos < len(full):
                x = full[pos]; pos += 1
                LD[x[0]](x[1])
    idx = {x: i for i, x in enumerate(full)}
    while qdone < 40:
        while qdone < 40 and idx[("q", qdone)] <= pos - W:
            useQ(qdone); qdone += 1
        if qdone < 40:
            x = full[pos]
            if x[0] == "q":
                assert x[1] - qdone < NQR
            assert x[0] != "v"
            a.window(W + 2)
            issue()
    a(f"""
    v_lshrrev_b32 v{TT}, 4, v{LANE}
    v_and_b32 v{TT+1}, 15, v0
    v_lshl_add_u32 v{TT+2}, v{TT}, 5, v{TT+1}
    v_lshlrev_b32 v{TT+2}, 2, v{TT+2}
    v_and_b32 v{TT+3}, 8, v0
    v_lshl_add_u32 v{TT+2}, v{TT+3}, 8, v{TT+2}
    s_lshl_b32 s7, s3, 9
    v_add_u32 v{TT+2}, s7, v{TT+2}
    v_and_b32 v{TT+3}, 3, v0
    v_lshl_add_u32 v{TT+3}, v{TT}, 2, v{TT+3}
    v_lshlrev_b32 v{TT+3}, 5, v{TT+3}
    """)
    for r in range(4):
        a(f"ds_write_b32 v{TT+2}, v{D[0]+r} offset:{L_Q + r*32}")
    issue()
    a("s_waitcnt lgkmcnt(0)\ns_barrier")
    QP = RAW
    for w in range(4):
        for hf in range(2):
            a(f"ds_read_b128 {vr(QP+8*w+4*hf)}, v{TT+3} offset:{L_Q + w*512 + hf*16}")
    assert "init" not in a.vm
    a(f"""
    s_cmp_lt_u32 s2, 31
    s_cselect_b32 s7, s3, 1
    s_cmp_eq_u32 s7, 0
    s_cbranch_scc0 L_nosig
    s_mov_b32 s7, 1
    s_atomic_add s7, s[60:61], 0x0
    L_nosig:
    s_waitcnt lgkmcnt(0)
    """)
    for j in range(8):
        a(f"v_add_f32 v{QP+j}, v{QP+j}, v{QP+8+j}\nv_add_f32 v{QP+16+j}, v{QP+16+j}, v{QP+24+j}\nv_add_f32 v{QP+j}, v{QP+j}, v{QP+16+j}")
    for j in range(4):
        a(f"v_cvt_pk_bf16_f32 v{QP+j}, v{QP+2*j}, v{QP+2*j+1}")
    for t in range(4):
        m = 0x000F000F << (4 * t)
        a(f"s_mov_b32 s68, {m:#x}\ns_mov_b32 s69, {m:#x}")
        for j in range(4):
            a(f"v_cndmask_b32 v{QB+4*t+j}, 0, v{QP+j}, s[68:69]")
    for s in range(1, 4):
        m = 0x11111111 << s
        a(f"s_mov_b32 s{68+2*s}, {m:#x}\ns_mov_b32 s{69+2*s}, {m:#x}")
    issue()
    stamp(1)
    def post(u):
        Dd = D[u & 1]; dst = P + (u >> 2) if (u & 3) == 0 else TT
        a(f"v_mov_b32_dpp v{TT}, v{Dd} quad_perm:[0,0,0,0] {DPPF}")
        a(f"v_add_f32_dpp v{TT}, v{Dd+1}, v{TT} quad_perm:[1,1,1,1] {DPPF}")
        a(f"v_add_f32_dpp v{TT}, v{Dd+2}, v{TT} quad_perm:[2,2,2,2] {DPPF}")
        a(f"v_add_f32_dpp v{dst}, v{Dd+3}, v{TT} quad_perm:[3,3,3,3] {DPPF}")
        if u & 3:
            s = u & 3
            a(f"v_cndmask_b32 v{P+(u>>2)}, v{P+(u>>2)}, v{TT}, s[{68+2*s}:{69+2*s}]")
        else:
            a("s_nop 0")
    for u in range(16):
        while idx[("k", 4 * u + 3)] > pos - min(W, 7):
            issue()
        a.need(("k", 4 * u + 3))
        for t in range(4):
            c = "0" if t == 0 else vr(D[u & 1])
            a(f"v_mfma_f32_16x16x32_bf16 {vr(D[u&1])}, {ar(16*u+4*t)}, {vr(QB+4*t)}, {c}")
        st["k"] = 4 * u + 4
        if u == 0:
            a("s_nop 4")
        else:
            post(u - 1)
        if u % 3 == 2:
            assert full[pos][0] != "o" or full[pos][1] < 4 * u
            issue()
    a("s_nop 3")
    post(15)
    S = TT + 2
    for i in range(2):
        a(f"v_cvt_pk_bf16_f32 v{TT}, v{P+2*i}, v{P+2*i+1}")
        a(f"v_lshlrev_b32 v{S+2*i}, 16, v{TT}\nv_and_b32 v{S+2*i+1}, 0xffff0000, v{TT}")
        a(f"v_mul_f32 v{S+2*i}, 0x3db504f3, v{S+2*i}\nv_mul_f32 v{S+2*i+1}, 0x3db504f3, v{S+2*i+1}")
        a(f"v_cvt_pk_bf16_f32 v{TT}, v{S+2*i}, v{S+2*i+1}")
        a(f"v_lshlrev_b32 v{S+2*i}, 16, v{TT}\nv_and_b32 v{S+2*i+1}, 0xffff0000, v{TT}")
    MX, LS = TT + 6, TT + 7
    a(f"v_max_f32 v{MX}, v{S}, v{S+1}\nv_max3_f32 v{MX}, v{MX}, v{S+2}, v{S+3}")
    allreduce(a, "v_max_f32", MX, TT)
    issue()
    for i in range(4):
        a(f"v_sub_f32 v{P+i}, v{S+i}, v{MX}\nv_mul_f32 v{P+i}, 0x3fb8aa3b, v{P+i}\nv_exp_f32 v{P+i}, v{P+i}")
    a(f"s_nop 0\nv_add_f32 v{LS}, v{P}, v{P+1}\nv_add_f32 v{TT}, v{P+2}, v{P+3}\nv_add_f32 v{LS}, v{LS}, v{TT}")
    allreduce(a, "v_add_f32", LS, TT)
    a(f"s_lshl_b32 s7, s3, 3\nv_mov_b32 v{TT}, s7\nds_write_b64 v{TT}, v[{MX}:{LS}] offset:{L_ML}")
    issue()
    a(f"s_waitcnt lgkmcnt(0)\ns_barrier\nv_mov_b32 v{TT}, 0")
    ML = BIG
    a(f"ds_read_b128 {vr(ML)}, v{TT} offset:{L_ML}\nds_read_b128 {vr(ML+4)}, v{TT} offset:{L_ML+16}")
    issue()
    a("s_waitcnt lgkmcnt(0)")
    a(f"v_max_f32 v{MX}, v{ML}, v{ML+2}\nv_max3_f32 v{MX}, v{MX}, v{ML+4}, v{ML+6}")
    for w in range(4):
        a(f"v_sub_f32 v{ML+2*w}, v{ML+2*w}, v{MX}\nv_mul_f32 v{ML+2*w}, 0x3fb8aa3b, v{ML+2*w}\nv_exp_f32 v{ML+2*w}, v{ML+2*w}")
    for i in range(4):
        a(f"v_sub_f32 v{P+i}, v{S+i}, v{MX}\nv_mul_f32 v{P+i}, 0x3fb8aa3b, v{P+i}\nv_exp_f32 v{P+i}, v{P+i}")
    a(f"v_mul_f32 v{LS}, v{ML}, v{ML+1}")
    for w in range(1, 4):
        a(f"v_fmac_f32 v{LS}, v{ML+2*w}, v{ML+2*w+1}")
    a(f"v_rcp_f32 v{LS}, v{LS}\ns_nop 0")
    PP = XN - 0
    for i in range(4):
        a(f"v_mul_f32 v{P+i}, v{P+i}, v{LS}")
    for i in range(4):
        a(f"v_cvt_pk_bf16_f32 v{P+i}, v{P+i}, v{P+i}")
    stamp(2)
    a(f"""
    v_lshrrev_b32 v{T1}, 4, v{LANE}
    v_and_b32 v{TT}, 1, v0
    v_lshl_add_u32 v{TT}, v{TT}, 2, v{T1}
    s_lshl_b32 s7, s3, 4
    v_add_u32 v{TT}, s7, v{TT}
    v_bfe_u32 v{TT+1}, v0, 1, 2
    v_lshlrev_b32 v{TT+1}, 2, v{TT+1}
    v_lshl_add_u32 v{APV}, v{TT}, 4, v{TT+1}
    v_bfe_u32 v{TT}, v0, 2, 5
    v_mul_u32_u24 v{TT}, 20, v{TT}
    v_lshrrev_b32 v{TT+1}, 7, v0
    v_mul_u32_u24 v{TT+1}, 3, v{TT+1}
    v_and_b32 v{TT+2}, 3, v0
    v_add3_u32 v{TT}, v{TT}, v{TT+1}, v{TT+2}
    v_lshlrev_b32 v{AAT}, 2, v0
    """)
    for k in range(4):
        a(f"""
        v_add_u32 v{TT+1}, {6*k}, v{TT}
        v_lshrrev_b32 v{TT+2}, 5, v{TT+1}
        v_lshlrev_b32 v{TT+2}, 8, v{TT+2}
        v_and_b32 v{TT+3}, 7, v{TT+1}
        v_lshl_add_u32 v{TT+2}, v{TT+3}, 4, v{TT+2}
        v_bfe_u32 v{TT+3}, v{TT+1}, 3, 2
        v_lshl_add_u32 v{AOP+k}, v{TT+3}, 2, v{TT+2}
        """)
    a(f"""
    s_and_b32 s70, s2, 7
    s_lshr_b32 s71, s2, 3
    s_min_u32 s72, s70, 3
    s_mul_i32 s73, s70, 3
    s_add_u32 s73, s73, s72
    s_cmp_lt_u32 s70, 3
    s_cselect_b32 s72, 4, 3
    s_lshl_b32 s7, s70, 8
    s_add_u32 s7, s7, {TICK}
    s_add_u32 s74, s62, s7
    s_addc_u32 s75, s63, 0
    s_mul_i32 s67, s5, {ACC1_B}
    s_mov_b32 s68, 0x88888888
    s_mov_b32 s69, 0x88888888
    """)

    def usePV(i):
        B = BA[i & 1]; u, t = i >> 2, i & 3
        selB(B, P + (u >> 2), 4 * t + (u & 3))
        a.need(("v", i))
        a("s_nop 1")
        c = "0" if i == 0 else vr(D[0])
        a(f"v_mfma_f32_16x16x32_bf16 {vr(D[0])}, {vr(RING+4*(i%NRING))}, {vr(B)}, {c}")
        st["v"] = i + 1
    vdone = 0
    checked = False
    while pos < len(full):
        n = 0
        while vdone < 64 - tailW and idx[("v", vdone)] <= pos - W and n < 3:
            usePV(vdone); vdone += 1; n += 1
        x = full[pos]
        if x[0] == "v":
            while x[1] - vdone >= NRING:
                usePV(vdone); vdone += 1
        a.window(W + 6)
        issue()
        if x == ("v", 36):
            a(f"v_mov_b32 v{TT+1}, 0")
            a.vmem(f"global_load_dword v{TT}, v{TT+1}, s[60:61] sc1", "ichk")
        if x == ("v", 48):
            a.need("ichk")
            a(f"""
            L_ichk:
            v_cmp_gt_u32 vcc, 31, v{TT}
            s_cbranch_vccz L_iok
            {spin()}
            global_load_dword v{TT}, v{TT+1}, s[60:61] sc1
            s_waitcnt vmcnt(0)
            s_branch L_ichk
            L_iok:
            """)
    while vdone < 64 - tailW:
        usePV(vdone); vdone += 1
    stamp(3)
    a(f"""
    s_lshl_b32 s7, s72, 1
    s_cmp_lt_u32 s71, s7
    s_cbranch_scc1 L_roleG
    s_sub_u32 s77, s71, 8
    s_cmp_lt_u32 s77, 10
    s_cbranch_scc1 L_roleD
    """)
    vm0 = list(a.vm)

    def att_tail(name, pre):
        a.vm = list(vm0)
        pre = list(pre)
        per = (len(pre) + tailW - 1) // tailW
        for i in range(64 - tailW, 64):
            usePV(i)
            if i < 63:
                for _ in range(per):
                    if pre: pre.pop(0)()
        for j in range(40):
            assert ("o", j) not in a.vm
        a(f"s_lshl_b32 s7, s3, 10\nv_add_u32 v{TT}, s7, v{AL16}\ns_mul_i32 s7, s3, 5120\nv_add_u32 v{T2}, s7, v{AL16}")
        a("s_nop 3")
        a(f"ds_write_b128 v{TT}, {vr(D[0])} offset:{L_PV}")
        a("s_waitcnt lgkmcnt(0)\ns_barrier")
        assert L_PV % 256 == 0
        o = L_PV // 256
        a(f"ds_read2st64_b32 v[{BA[0]}:{BA[0]+1}], v{APV} offset0:{o} offset1:{o+4}")
        a(f"ds_read2st64_b32 v[{BA[0]+2}:{BA[0]+3}], v{APV} offset0:{o+8} offset1:{o+12}")
        for f in pre: f()
        a("s_waitcnt lgkmcnt(0)")
        stamp(4)
        a(f"""
        v_add_f32 v{BA[0]}, v{BA[0]}, v{BA[0]+1}
        v_add_f32 v{BA[0]+2}, v{BA[0]+2}, v{BA[0]+3}
        s_mov_b32 s76, 1
        v_add_f32 v{BA[0]}, v{BA[0]}, v{BA[0]+2}
        s_cmp_eq_u32 s3, 0
        v_cvt_pk_bf16_f32 v{T0}, v{BA[0]}, v{BA[0]}
        s_cbranch_scc0 L_notick{name}
        s_atomic_add s76, s[74:75], 0x0 glc
        L_notick{name}:
        s_nop 0
        """)
        OB = QB; OD = BIG
        selB(OB, T0, 0)
        order = [(t, G) for t in range(6) for G in range(5)] + [(t, G) for G in range(5) for t in (6, 7)]
        pend = [(t, r) for t in range(1, 8) for r in range(4)]
        a("s_nop 1")
        lastm = {}
        wr = 0
        for n, (t, G) in enumerate(order):
            c = "0" if t == 0 else vr(OD + 4 * G)
            a(f"v_mfma_f32_16x16x32_bf16 {vr(OD+4*G)}, {ar(4*(5*t+G))}, {vr(OB+4*t)}, {c}")
            if pend and not (n % 5 >= 3 and pend[0][0] == t + 1):
                k = 2 if (n % 5 == 0 and n < 5) or pend[0][0] == t + 1 else 1
                for _ in range(k):
                    if pend:
                        tt, r = pend.pop(0)
                        a(f"v_and_b32_dpp v{OB+4*tt+r}, v{T0}, v{M+r} row_newbcast:{tt} {DPPF}")
        assert not pend
        a(f"ds_write_b128 v{T2}, {vr(OD)} offset:{L_OP}")
        a("s_nop 0")
        a(f"ds_write_b128 v{T2}, {vr(OD+4)} offset:{L_OP+1024}")
        a("s_nop 0")
        a(f"ds_write_b128 v{T2}, {vr(OD+8)} offset:{L_OP+2048}")
        a("s_nop 0")
        a(f"ds_write_b128 v{T2}, {vr(OD+12)} offset:{L_OP+3072}")
        a("s_nop 0")
        a(f"ds_write_b128 v{T2}, {vr(OD+16)} offset:{L_OP+4096}")
        a(f"""
        s_waitcnt lgkmcnt(0)
        s_cmp_eq_u32 s76, 31
        s_cbranch_scc0 L_noflag{name}
        v_lshlrev_b32 v{T0}, 8, v{LANE}
        v_mov_b32 v{T1}, 1
        s_lshl_b32 s7, s70, 2
        s_add_u32 s7, s7, {FLAGS}
        s_mov_b64 exec, 0xffff
        buffer_store_dword v{T1}, v{T0}, s[28:31], s7 offen sc1
        s_mov_b64 exec, -1
        L_noflag{name}:
        s_barrier
        """)
        a.vm.append("maybe")
        o = L_OP // 256
        R = QB
        for k in range(4):
            a(f"ds_read2st64_b32 v[{R+4*k}:{R+4*k+1}], v{AOP+k} offset0:{o} offset1:{o+20}")
            a(f"ds_read2st64_b32 v[{R+4*k+2}:{R+4*k+3}], v{AOP+k} offset0:{o+40} offset1:{o+60}")
        for k in range(4):
            if k == 3:
                a(f"s_cmp_ge_u32 s3, 2\ns_cbranch_scc1 L_no3{name}")
            a(f"s_waitcnt lgkmcnt({6-2*k})")
            a(f"v_add_f32 v{R+4*k}, v{R+4*k}, v{R+4*k+1}\nv_add_f32 v{R+4*k+2}, v{R+4*k+2}, v{R+4*k+3}\nv_add_f32 v{R+4*k}, v{R+4*k}, v{R+4*k+2}")
            a(f"v_cndmask_b32 v{R+4*k}, v{R+4*k}, 1.0, s[68:69]")
            a(f"buffer_atomic_add_f32 v{R+4*k}, v{AAT}, s[28:31], s67 offen offset:{ACC1 + k*1024}")
        a(f"L_no3{name}:")
        a("s_waitcnt lgkmcnt(0)")
        stamp(5)

    def transpose(src, dst):
        for t in range(4):
            for p in range(4):
                sel = "s78" if t & 1 else "s79"
                a(f"v_perm_b32 v{dst+4*t+p}, v{src+2*(2*p+1)+(t>>1)}, v{src+2*(2*p)+(t>>1)}, {sel}")

    def write_stamps():
        if stamps:
            a("s_waitcnt vmcnt(0)")
            stamp(9)
            a("s_waitcnt lgkmcnt(0)")
            for i in range(10):
                a(f"v_mov_b32 v{BIG+i}, s{80+2*i}")
            a(f"s_getreg_b32 s7, hwreg(HW_REG_XCC_ID)\nv_mov_b32 v{BIG+10}, s7\nv_mov_b32 v{BIG+11}, s79")
            a(f"s_lshl_b32 s7, s2, 2\ns_add_u32 s7, s7, s3\ns_lshl_b32 s7, s7, 6\ns_add_u32 s7, s7, {STAMP}\nv_mov_b32 v{T0}, s7")
            for i in range(3):
                a(f"global_store_dwordx4 v{T0}, {vr(BIG+4*i)}, s[62:63] offset:{16*i}")

    att_tail("N", [])
    if stamps:
        a("s_mov_b32 s92, 0\ns_mov_b32 s94, 0\ns_mov_b32 s96, 0\ns_mov_b32 s79, 0")
    write_stamps()
    a("s_endpgm")

    a("L_roleG:")
    a(f"""
    s_lshr_b32 s7, s71, 1
    s_add_u32 s73, s73, s7
    s_and_b32 s77, s71, 1
    s_cmp_eq_u32 s77, 0
    s_cselect_b32 s32, s52, s54
    s_cselect_b32 s33, s53, s55
    s_mov_b32 s34, {640*3456}
    s_mov_b32 s35, 0x20000
    v_lshrrev_b32 v{T1}, 4, v{LANE}
    v_mul_u32_u24 v{T1}, {8*3456}, v{T1}
    v_and_b32 v{T0}, 15, v0
    v_lshl_add_u32 v{T1}, v{T0}, 3, v{T1}
    s_mul_i32 s7, s3, {160*3456}
    s_lshl_b32 s65, s73, 7
    s_add_u32 s7, s7, s65
    v_add_u32 v{WOFF}, s7, v{T1}
    """)
    def ldG(n):
        s, jj = n // 8, n % 8
        def f():
            a(f"s_mov_b32 s65, {(32*s+jj)*3456}")
            a.vmem(f"buffer_load_dwordx2 {vr(RAW+2*n, 2)}, v{WOFF}, s[32:35], s65 offen {ff}", ("g", n))
        return f
    att_tail("G", [ldG(n) for n in range(16)])
    for n in range(16, 40):
        ldG(n)()
    XR = QB
    AX, AA, AH, AF, AG = 2, 3, 4, 5, 12
    a(f"""
    v_lshrrev_b32 v{T0}, 5, v0
    v_and_b32 v{T1}, 31, v0
    v_mul_u32_u24 v{T2}, 40, v{T1}
    v_mul_u32_u24 v{AX}, 1280, v{T0}
    v_add_u32 v{AX}, v{AX}, v{T2}
    v_mul_u32_u24 v{AH}, {HN_STR}, v{T0}
    v_add_u32 v{AH}, v{AH}, v{T2}
    v_mul_u32_u24 v{AA}, {ACC1_B}, v{T0}
    v_lshl_add_u32 v{AA}, v{T1}, 4, v{AA}
    """)
    for i in range(5):
        a.vmem(f"buffer_load_dwordx2 {vr(XR+2*i, 2)}, v{AX}, s[24:27], 0 offen offset:{8*i}", "xr")
    a(f"""
    v_and_b32 v{T0}, 7, v0
    v_mul_u32_u24 v{AF}, {HN_STR}, v{T0}
    v_lshrrev_b32 v{T1}, 4, v{LANE}
    v_lshl_add_u32 v{AF}, v{T1}, 4, v{AF}
    s_mul_i32 s7, s3, 320
    v_add_u32 v{AF}, s7, v{AF}
    v_bfe_u32 v{T0}, v0, 5, 1
    v_lshlrev_b32 v{T0}, 3, v{T0}
    s_lshl_b32 s7, s3, 1
    v_bfe_u32 v{T1}, v0, 1, 1
    v_add3_u32 v{T0}, v{T0}, s7, v{T1}
    v_bfe_u32 v{T1}, v0, 4, 1
    v_lshl_add_u32 v{T0}, v{T1}, 4, v{T0}
    v_lshlrev_b32 v{T0}, 4, v{T0}
    v_and_b32 v{T1}, 12, v0
    v_add_u32 v{T0}, v{T0}, v{T1}
    v_and_b32 v{T1}, 1, v0
    v_lshl_add_u32 v{AG}, v{T1}, 11, v{T0}
    s_lshl_b32 s7, s3, 12
    v_add_u32 v13, s7, v{AL16}
    s_mov_b32 s78, 0x07060302
    s_mov_b32 s79, 0x05040100
    v_and_b32 v14, 7, v0
    v_lshlrev_b32 v14, 2, v14
    s_mul_i32 s76, s77, 27
    s_add_u32 s76, s76, s73
    s_and_b32 s7, {'s76' if fpoll == 's' else 's2'}, 15
    s_lshl_b32 s7, s7, 8
    s_add_u32 s7, s7, {FLAGS}
    s_add_u32 s74, s62, s7
    s_addc_u32 s75, s63, 0
    s_lshl_b32 s76, s76, 10
    s_add_u32 s76, s76, {SU}
    """)
    WT = RING
    younger = 24 + 5
    a(f"s_waitcnt vmcnt({younger})")
    transpose(RAW, WT); transpose(RAW + 16, WT + 16)
    for s in range(2, 5):
        a(f"s_waitcnt vmcnt({(4-s)*8+5})")
        transpose(RAW + 16 * s, WT + 16 * s)
    a("s_waitcnt vmcnt(0)")
    a.vm = []
    XF = RAW + 32
    for i in range(10):
        a(f"v_lshlrev_b32 v{XF+2*i}, 16, v{XR+i}\nv_and_b32 v{XF+2*i+1}, 0xffff0000, v{XR+i}")
    AC = RAW
    a("s_mov_b32 s79, 0")
    a(f"s_mov_b32 s66, {1 if dry else 0}")
    if dry:
        a("s_branch L_Gbody")
    if fpoll == 's':
        POLL = """s_load_dwordx8 s[40:47], s[74:75], 0x0 glc
        s_waitcnt lgkmcnt(0)
        s_and_b32 s40, s40, s41
        s_and_b32 s42, s42, s43
        s_and_b32 s44, s44, s45
        s_and_b32 s46, s46, s47
        s_and_b32 s40, s40, s42
        s_and_b32 s44, s44, s46
        s_and_b32 s40, s40, s44
        s_cbranch_scc0 L_Gpoll"""
    else:
        POLL = f"""global_load_dword v{T1}, v14, s[74:75] sc1
        s_waitcnt vmcnt(0)
        v_cmp_eq_u32 vcc, 0, v{T1}
        s_cbranch_vccnz L_Gpoll"""
    a("L_Gwait:")
    a(f"""
    s_cmp_eq_u32 s3, 0
    s_cbranch_scc0 L_Gbar
    L_Gpoll:
    {spin()}
    {POLL}
    L_Gbar:
    s_barrier
    """)
    stamp(6)
    a("L_Gread:")
    a(spin())
    for i in range(7):
        a(f"buffer_load_dwordx4 {vr(AC+4*i)}, v{AA}, s[28:31], 0 offen offset:{ACC1 + 512*i} sc1")
    if stamps:
        a("s_add_u32 s79, s79, 1")
    a(f"""
    s_waitcnt vmcnt(0)
    v_min3_f32 v{T0}, v{AC+3}, v{AC+7}, v{AC+11}
    v_min3_f32 v{T1}, v{AC+15}, v{AC+19}, v{AC+23}
    v_min3_f32 v{T0}, v{T0}, v{T1}, v{AC+27}
    v_cmp_neq_f32 vcc, 0x42000000, v{T0}
    s_cbranch_vccnz L_Gread
    """)
    stamp(7)
    a("L_Gbody:")
    H = RAW + 52
    val = [AC + 4 * (e // 3) + e % 3 for e in range(20)]
    for i in range(10):
        a(f"v_cvt_pk_bf16_f32 v{T0}, v{val[2*i]}, v{val[2*i+1]}")
        a(f"v_lshlrev_b32 v{H+2*i}, 16, v{T0}\nv_and_b32 v{H+2*i+1}, 0xffff0000, v{T0}")
        a(f"v_pk_add_f32 {vr(H+2*i,2)}, {vr(H+2*i,2)}, {vr(XF+2*i,2)}")
        a(f"v_cvt_pk_bf16_f32 v{T0}, v{H+2*i}, v{H+2*i+1}")
        a(f"v_lshlrev_b32 v{H+2*i}, 16, v{T0}\nv_and_b32 v{H+2*i+1}, 0xffff0000, v{T0}")
        if i == 1:
            a(f"v_pk_add_f32 {vr(TT,2)}, {vr(H,2)}, {vr(H+2,2)}")
        elif i > 1:
            a(f"v_pk_add_f32 {vr(TT,2)}, {vr(TT,2)}, {vr(H+2*i,2)}")
    a(f"v_add_f32 v{TT}, v{TT}, v{TT+1}")
    allreduce(a, "v_add_f32", TT, TT + 1, rows=2)
    a(f"v_mul_f32 v{TT}, 0xbacccccd, v{TT}")
    rbf(a, TT + 2, TT)
    for i in range(10):
        a(f"v_pk_add_f32 {vr(TT+4,2)}, {vr(H+2*i,2)}, {vr(TT,2)} op_sel_hi:[1,0]")
        if i == 0:
            a(f"v_pk_mul_f32 {vr(TT+6,2)}, {vr(TT+4,2)}, {vr(TT+4,2)}")
        else:
            a(f"v_pk_fma_f32 {vr(TT+6,2)}, {vr(TT+4,2)}, {vr(TT+4,2)}, {vr(TT+6,2)}")
    a(f"v_add_f32 v{TT+6}, v{TT+6}, v{TT+7}")
    steps = ["quad_perm:[1,0,3,2]", "quad_perm:[2,3,0,1]", "row_half_mirror", "row_mirror"]
    for i in range(10):
        a(f"v_pk_add_f32 {vr(H+2*i,2)}, {vr(H+2*i,2)}, {vr(TT+2,2)} op_sel_hi:[1,0]")
        a(f"v_cvt_pk_bf16_f32 v{T0}, v{H+2*i}, v{H+2*i+1}")
        a(f"v_lshlrev_b32 v{H+2*i}, 16, v{T0}\nv_and_b32 v{H+2*i+1}, 0xffff0000, v{T0}")
        V_ = TT + 6
        if i < 4:
            a(f"v_add_f32_dpp v{V_}, v{V_}, v{V_} {steps[i]} {DPPF}")
            if i == 3:
                a(f"v_mov_b32 v{V_+1}, v{V_}")
        elif i == 4:
            a(f"v_permlane16_swap_b32 v{V_}, v{V_+1}")
        elif i == 5:
            a(f"v_add_f32 v{V_}, v{V_}, v{V_+1}\nv_mul_f32 v{V_}, 0x3acccccd, v{V_}")
            rbf(a, V_, V_)
            a(f"v_add_f32 v{V_}, 0x3727c5ac, v{V_}")
            rbf(a, V_, V_)
            a(f"v_sqrt_f32 v{V_}, v{V_}")
        elif i == 6:
            rbf(a, V_, V_)
            a(f"v_rcp_f32 v{V_}, v{V_}")
    HP = AC
    for i in range(10):
        a(f"v_pk_mul_f32 {vr(H+2*i,2)}, {vr(H+2*i,2)}, {vr(TT+6,2)} op_sel_hi:[1,0]")
        a(f"v_cvt_pk_bf16_f32 v{HP+i}, v{H+2*i}, v{H+2*i+1}")
        if i & 1:
            a(f"ds_write_b64 v{AH}, {vr(HP+i-1,2)} offset:{L_HN + 4*(i-1)}")
    a("s_waitcnt lgkmcnt(0)\ns_barrier")
    FA = BIG
    for s in range(5):
        a(f"ds_read_b128 {vr(FA+4*s)}, v{AF} offset:{L_HN + 64*s}")
    GD = QB
    for s in range(5):
        a(f"s_waitcnt lgkmcnt({4-s})")
        for t in range(4):
            c = "0" if s == 0 else vr(GD + 4 * t)
            a(f"v_mfma_f32_16x16x32_bf16 {vr(GD+4*t)}, {vr(FA+4*s)}, {vr(WT+16*s+4*t)}, {c}")
    a("s_nop 4")
    for t in range(4):
        a(f"ds_write_b128 v13, {vr(GD+4*t)} offset:{L_GP + 1024*t}")
    a("s_waitcnt lgkmcnt(0)\ns_barrier")
    o = L_GP // 256
    for w in range(4):
        a(f"ds_read2st64_b32 {vr(FA+2*w,2)}, v{AG} offset0:{o+16*w} offset1:{o+16*w+4}")
    a(f"""
    s_cmp_eq_u32 s77, 0
    s_waitcnt lgkmcnt(2)
    v_pk_add_f32 {vr(FA,2)}, {vr(FA,2)}, {vr(FA+2,2)}
    s_waitcnt lgkmcnt(0)
    v_pk_add_f32 {vr(FA+4,2)}, {vr(FA+4,2)}, {vr(FA+6,2)}
    v_pk_add_f32 {vr(FA,2)}, {vr(FA,2)}, {vr(FA+4,2)}
    v_cvt_pk_bf16_f32 v{T0}, v{FA}, v{FA+1}
    s_cbranch_scc0 L_Gup
    v_lshlrev_b32 v{FA}, 16, v{T0}
    v_and_b32 v{FA+1}, 0xffff0000, v{T0}
    v_mul_f32 v{FA}, 0xbfb8aa3b, v{FA}
    v_mul_f32 v{FA+1}, 0xbfb8aa3b, v{FA+1}
    v_exp_f32 v{FA}, v{FA}
    v_exp_f32 v{FA+1}, v{FA+1}
    s_nop 0
    v_add_f32 v{FA}, 1.0, v{FA}
    v_add_f32 v{FA+1}, 1.0, v{FA+1}
    v_rcp_f32 v{FA}, v{FA}
    v_rcp_f32 v{FA+1}, v{FA+1}
    s_nop 0
    v_cvt_pk_bf16_f32 v{T0}, v{FA}, v{FA+1}
    L_Gup:
    v_min_u32 v{T0}, -2, v{T0}
    s_cmp_eq_u32 s66, 0
    s_mov_b32 s66, 0
    s_cbranch_scc0 L_Gwait
    buffer_store_dword v{T0}, v{AAT}, s[28:31], s76 offen
    """)
    stamp(8)
    a(f"""
    s_waitcnt vmcnt(0)
    {'s_sleep %d' % slp if slp else ''}
    buffer_store_dword v{T0}, v{AAT}, s[28:31], s76 offen sc1
    """)
    write_stamps()
    a("s_endpgm")

    a("L_roleD:")
    a(f"""
    s_mov_b32 s32, s56
    s_mov_b32 s33, s57
    s_mov_b32 s34, {1728*1280}
    s_mov_b32 s35, 0x20000
    v_lshrrev_b32 v{T1}, 4, v{LANE}
    v_mul_u32_u24 v{T1}, {8*1280}, v{T1}
    v_and_b32 v{T0}, 15, v0
    v_lshl_add_u32 v{T1}, v{T0}, 3, v{T1}
    s_add_u32 s73, s73, s3
    s_mul_i32 s7, s73, {64*1280}
    s_lshl_b32 s65, s77, 7
    s_add_u32 s7, s7, s65
    s_cmp_lt_u32 s3, s72
    s_cselect_b32 s7, s7, 0x1000000
    v_add_u32 v{WOFF}, s7, v{T1}
    """)
    def ldD(n):
        s, jj = n // 8, n % 8
        def f():
            a(f"s_mov_b32 s65, {(32*s+jj)*1280}")
            a.vmem(f"buffer_load_dwordx2 {vr(RAW+2*n, 2)}, v{WOFF}, s[32:35], s65 offen {ff}", ("d", n))
        return f
    att_tail("D", [ldD(n) for n in range(16)])
    AD, AO, AA1 = 2, 5, 12
    XD = 92
    a(f"""
    v_lshrrev_b32 v{T0}, 2, v0
    v_mul_u32_u24 v{T0}, 3, v{T0}
    v_and_b32 v{T1}, 3, v0
    v_min_u32 v{T1}, 2, v{T1}
    v_add_u32 v{T0}, v{T0}, v{T1}
    v_lshrrev_b32 v{T1}, 6, v{T0}
    v_and_b32 v{T0}, 63, v{T0}
    v_and_b32 v{T2}, 3, v{T0}
    v_lshlrev_b32 v{T2}, 10, v{T2}
    v_lshrrev_b32 v{TT}, 2, v{T0}
    v_lshl_add_u32 v{T2}, v{TT}, 4, v{T2}
    """)
    for k in range(3):
        a(f"""
        v_add_u32 v{TT}, {3*k}, v{T1}
        v_lshrrev_b32 v{TT+1}, 2, v{TT}
        v_lshl_add_u32 v{TT+1}, v{TT+1}, 8, v{T2}
        v_and_b32 v{TT}, 3, v{TT}
        v_lshl_add_u32 v{AD+k}, v{TT}, 2, v{TT+1}
        """)
    a(f"""
    s_lshl_b32 s7, s77, 6
    v_add_u32 v{T0}, s7, v{T0}
    v_mul_u32_u24 v{AO}, 640, v{T1}
    v_add_lshl_u32 v{AO}, v{AO}, v{T0}, 1
    v_mul_u32_u24 v{TT}, 3277, v{T0}
    v_lshrrev_b32 v{TT}, 16, v{TT}
    v_mul_u32_u24 v{TT+1}, 20, v{TT}
    v_sub_u32 v{TT+1}, v{T0}, v{TT+1}
    v_mul_u32_u24 v{TT+2}, 86, v{TT+1}
    v_lshrrev_b32 v{TT+2}, 8, v{TT+2}
    v_mul_u32_u24 v{TT+3}, 3, v{TT+2}
    v_sub_u32 v{TT+3}, v{TT+1}, v{TT+3}
    v_lshl_add_u32 v{TT}, v{TT+2}, 5, v{TT}
    v_lshlrev_b32 v{TT}, 4, v{TT}
    v_lshl_add_u32 v{TT}, v{TT+3}, 2, v{TT}
    v_mul_u32_u24 v{AA1}, {ACC1_B}, v{T1}
    v_add_u32 v{AA1}, v{AA1}, v{TT}
    s_lshl_b32 s7, s3, 12
    v_add_u32 v13, s7, v{AL16}
    s_mov_b32 s78, 0x07060302
    s_mov_b32 s79, 0x05040100
    s_lshl_b32 s76, s73, 10
    s_add_u32 s76, s76, {SU}
    s_add_u32 s74, s76, {27*1024}
    s_mul_i32 s75, s77, 3072
    s_add_u32 s75, s75, {ACC3}
    s_mov_b32 s40, {3*1280}
    s_mov_b32 s41, {6*1280}
    s_mov_b32 s42, {3*ACC1_B}
    s_mov_b32 s43, {6*ACC1_B}
    v_cmp_gt_u32 s[44:45], 0xac, v0
    """.replace("v_cmp_gt_u32 s[44:45], 0xac, v0", "v_cmp_gt_u32 vcc, 0xac, v0\ns_mov_b64 s[44:45], vcc\nv_cmp_gt_u32 vcc, 0xaa, v0\ns_mov_b64 s[52:53], vcc\nv_or_b32 v14, 12, v12"))
    for k in range(3):
        so = ["0", "s40", "s41"][k]
        a(f"buffer_load_ushort v{XD+k}, v{AO}, s[24:27], {so} offen")
    a("s_waitcnt vmcnt(0)")
    a.vm = []
    WT = RING
    transpose(RAW, WT); transpose(RAW + 16, WT + 16)
    for k in range(3):
        a(f"v_lshlrev_b32 v{XD+k}, 16, v{XD+k}")
    SG, UU = BIG, BIG + 4
    a("s_mov_b32 s79, 0")
    a(f"s_mov_b32 s66, {1 if dry else 0}")
    for j in range(8):
        a(f"v_mov_b32 v{SG+j}, 0")
    if dry:
        a("s_branch L_Dbody")
    a("L_Dwait:")
    stamp(6)
    a(f"""
    s_cmp_lt_u32 s3, s72
    s_cbranch_scc0 L_Dbody
    L_Dpoll:
    {spin()}
    buffer_load_dwordx4 {vr(SG)}, v{AL16}, s[28:31], s76 offen sc1
    buffer_load_dwordx4 {vr(UU)}, v{AL16}, s[28:31], s74 offen sc1
    s_waitcnt vmcnt(0)
    v_max3_u32 v{T0}, v{SG}, v{SG+1}, v{SG+2}
    v_max3_u32 v{T1}, v{SG+3}, v{UU}, v{UU+1}
    v_max3_u32 v{T0}, v{T0}, v{UU+2}, v{UU+3}
    v_max_u32 v{T0}, v{T0}, v{T1}
    v_cmp_eq_u32 vcc, -1, v{T0}
    s_cbranch_vccnz L_Dpoll
    """)
    a("L_Dbody:")
    stamp(7)
    HA = BIG + 8; HB = BIG + 12
    for j in range(4):
        a(f"""
        v_lshlrev_b32 v{TT}, 16, v{SG+j}
        v_and_b32 v{TT+1}, 0xffff0000, v{SG+j}
        v_lshlrev_b32 v{TT+2}, 16, v{UU+j}
        v_and_b32 v{TT+3}, 0xffff0000, v{UU+j}
        v_pk_mul_f32 {vr(TT,2)}, {vr(TT,2)}, {vr(TT+2,2)}
        v_cvt_pk_bf16_f32 v{HA+j}, v{TT}, v{TT+1}
        """)
    for j in range(3):
        a(f"v_mov_b32_dpp v{HB+j}, v{HA+j} row_ror:8 {DPPF}")
    a(f"v_mov_b32_dpp v{HB+3}, v{HA+3} row_ror:8 {DPPF}")
    GD = QB
    for s in range(2):
        for t in range(4):
            c = "0" if s == 0 else vr(GD + 4 * t)
            a(f"v_mfma_f32_16x16x32_bf16 {vr(GD+4*t)}, {vr(HB if s else HA)}, {vr(WT+16*s+4*t)}, {c}")
    a("s_nop 4")
    for t in range(4):
        a(f"ds_write_b128 v13, {vr(GD+4*t)} offset:{L_GP + 1024*t}")
    a("s_waitcnt lgkmcnt(0)\ns_barrier")
    R = RAW
    for k in range(3):
        a(f"ds_read2st64_b32 {vr(R+4*k,2)}, v{AD+k} offset0:{o} offset1:{o+16}")
        a(f"ds_read2st64_b32 {vr(R+4*k+2,2)}, v{AD+k} offset0:{o+32} offset1:{o+48}")
    for k in range(3):
        a(f"s_waitcnt lgkmcnt({4-2*k})")
        a(f"v_add_f32 v{R+4*k}, v{R+4*k}, v{R+4*k+1}\nv_add_f32 v{R+4*k+2}, v{R+4*k+2}, v{R+4*k+3}\nv_add_f32 v{R+4*k}, v{R+4*k}, v{R+4*k+2}")
        a(f"v_cndmask_b32 v{R+4*k+1}, v{R+4*k}, 1.0, s[68:69]")
    a(f"""
    s_cmp_eq_u32 s66, 0
    s_cbranch_scc0 L_Dskip
    buffer_atomic_add_f32 v{R+1}, v{AAT}, s[28:31], s75 offen sc0
    buffer_atomic_add_f32 v{R+5}, v{AAT}, s[28:31], s75 offen offset:1024 sc0
    s_cmp_ge_u32 s3, 3
    s_cbranch_scc1 L_Dno2
    s_mov_b64 exec, s[44:45]
    buffer_atomic_add_f32 v{R+9}, v{AAT}, s[28:31], s75 offen offset:2048 sc0
    s_mov_b64 exec, -1
    L_Dno2:
    {spin()}
    buffer_load_dword v{R+3}, v14, s[28:31], 0 offen sc1
    buffer_load_dword v{R+7}, v14, s[28:31], s42 offen sc1
    buffer_load_dword v{R+11}, v14, s[28:31], s43 offen sc1
    buffer_load_dword v{R+2}, v{AA1}, s[28:31], 0 offen sc1
    buffer_load_dword v{R+6}, v{AA1}, s[28:31], s42 offen sc1
    buffer_load_dword v{R+10}, v{AA1}, s[28:31], s43 offen sc1
    s_waitcnt vmcnt(0)
    v_cndmask_b32 v{R+11}, v{R+7}, v{R+11}, s[52:53]
    v_min3_f32 v{R+3}, v{R+3}, v{R+7}, v{R+11}
    v_cmp_neq_f32 vcc, 0x42000000, v{R+3}
    s_cbranch_vccnz L_Dno2
    L_Dskip:
    """)
    stamp(8)
    for k in range(3):
        r = R + 4 * k
        a(f"""
        v_mov_b32_dpp v{r+3}, v{r+1} quad_perm:[3,3,3,3] {DPPF}
        v_add_f32 v{r}, v{r}, v{r+1}
        v_cvt_pk_bf16_f32 v{r}, v{r+2}, v{r}
        v_lshlrev_b32 v{r+2}, 16, v{r}
        v_and_b32 v{r}, 0xffff0000, v{r}
        v_add_f32 v{r+2}, v{r+2}, v{XD+k}
        v_cvt_pk_bf16_f32 v{r+2}, v{r+2}, v{r+2}
        v_and_b32 v{r+2}, 0xffff0000, v{r+2}
        v_add_f32 v{r}, v{r}, v{r+2}
        v_cvt_pk_bf16_f32 v{r}, v{r}, v{r}
        v_cmp_eq_f32 vcc, 0x40e00000, v{r+3}
        s_andn2_b64 s[{46+2*k}:{47+2*k}], vcc, s[68:69]
        """)
    a(f"""
    s_cmp_eq_u32 s66, 0
    s_mov_b32 s66, 0
    s_cbranch_scc1 L_Dstore
    s_barrier
    s_branch L_Dwait
    L_Dstore:
    s_and_b64 s[50:51], s[50:51], s[52:53]
    """)
    for k in range(3):
        so = ["0", "s40", "s41"][k]
        a(f"""
        s_mov_b64 exec, s[{46+2*k}:{47+2*k}]
        s_cbranch_execz L_Dns{k}
        buffer_store_short v{R+4*k}, v{AO}, s[36:39], {so} offen
        L_Dns{k}:
        """)
    a("s_mov_b64 exec, -1")
    write_stamps()
    a("L_end:")
    a("s_endpgm")

    head = open("sequential_preLN__sliding_block_cached__glu_gated_glu__decode.s.ref").read().split("; Override launch")[0]
    out = head + f"; @launch grid=(256,1,1) block=(256,1,1) lds={LDS_BYTES}\n"
    out += '.amdgcn_target "amdgcn-amd-amdhsa--gfx950"\n.text\n'
    out += f".globl {KN}\n.p2align 8\n.type {KN},@function\n{KN}:\n"
    out += "\n".join(a.L) + "\n"
    out += f""".section .rodata,"a"
.p2align 6
.amdhsa_kernel {KN}
  .amdhsa_next_free_vgpr 512
  .amdhsa_next_free_sgpr 102
  .amdhsa_accum_offset 256
  .amdhsa_group_segment_fixed_size 0
  .amdhsa_kernarg_size 96
  .amdhsa_user_sgpr_count 2
  .amdhsa_user_sgpr_kernarg_segment_ptr 1
  .amdhsa_system_sgpr_workgroup_id_x 1
  .amdhsa_float_denorm_mode_32 3
.end_amdhsa_kernel
"""
    return out

if __name__ == "__main__":
    kw = {}
    for x in sys.argv[2:]:
        k, v = x.split("=")
        kw[k] = eval(v)
    open(sys.argv[1], "w").write(gen(**kw))
```

```python
import sys, copy
KN = "sequential_preLN__sliding_block_cached__glu_gated_glu__decode_kernel"

ACC1 = 0
ACC1_B = 3584
ACC3 = 28672
FLAGS = 59392
TICK = FLAGS + 4096
SU = 69632
WS_USED = 31 * 4096
STAMP = 1 << 20

L_Q = 0
L_ML = 4096
L_PV = 5120
L_OP = 9216
L_HN = 30720
HN_STR = 1312
L_GP = 41472
LDS_BYTES = 57856

class Asm:
    def __init__(self):
        self.L = []
        self.vm = []
    def __call__(self, s):
        for x in s.split("\n"):
            x = x.strip()
            if x:
                self.L.append(x if x.endswith(":") else "  " + x)
    def vmem(self, s, tag=None):
        self(s)
        self.vm.append(tag)
        assert len(self.vm) <= 63, "too many outstanding vmem"
    def need(self, tag):
        if tag in self.vm:
            i = len(self.vm) - 1 - self.vm[::-1].index(tag)
            n = len(self.vm) - 1 - i
            self(f"s_waitcnt vmcnt({n})")
            self.vm = self.vm[i + 1:]
    def window(self, n):
        if len(self.vm) > n:
            self(f"s_waitcnt vmcnt({n})")
            self.vm = self.vm[len(self.vm) - n:] if n else []

def vr(b, n=4): return f"v[{b}:{b+n-1}]"
def ar(b, n=4): return f"a[{b}:{b+n-1}]"
DPPF = "row_mask:0xf bank_mask:0xf"

def allreduce(a, op, v, t, rows=4):
    for c in ["quad_perm:[1,0,3,2]", "quad_perm:[2,3,0,1]", "row_half_mirror", "row_mirror"]:
        a("s_nop 1")
        a(f"{op}_dpp v{v}, v{v}, v{v} {c} {DPPF}")
    a(f"v_mov_b32 v{t}, v{v}")
    a("s_nop 1")
    a(f"v_permlane16_swap_b32 v{v}, v{t}")
    a("s_nop 0")
    a(f"{op} v{v}, v{v}, v{t}")
    if rows == 4:
        a(f"v_mov_b32 v{t}, v{v}")
        a("s_nop 1")
        a(f"v_permlane32_swap_b32 v{v}, v{t}")
        a("s_nop 0")
        a(f"{op} v{v}, v{v}, v{t}")

def rbf(a, d, s):
    a(f"v_cvt_pk_bf16_f32 v{d}, v{s}, v{s}")
    a(f"v_and_b32 v{d}, 0xffff0000, v{d}")

def mixseq(main, extra, upto=None, skip=0):
    upto = len(main) if upto is None else upto
    seq = list(main[:skip]); acc = 0.0; ri = 0
    for x in main[skip:upto]:
        acc += len(extra) / (upto - skip)
        while acc >= 1.0 - 1e-9 and ri < len(extra):
            seq.append(extra[ri]); ri += 1; acc -= 1.0
        seq.append(x)
    return seq + extra[ri:] + list(main[upto:])

def gen(rot=16, W=10, stamps=False, wq_upto=54, dry=True, tailW=8, bound=200000, slp=6, fpoll='v', kf='nt', vf='nt', wf='nt', ff='nt', badmap=False, delay=0):
    a = Asm()
    def spin():
        return f"s_add_u32 s100, s100, 1\ns_cmp_gt_u32 s100, {bound}\ns_cbranch_scc1 L_end\n" if bound else ''
    LANE, KOFF, VOFF, QOFF, OOFF = 1, 2, 3, 4, 5
    T0, T1 = 6, 7
    M = 8
    XN = 12
    T2 = 15
    BA = [16, 20]
    D = [24, 28]
    QB = 32
    P = 48
    TT = 52
    BIG = 64
    RING = 96; NRING = 20
    NQR = 12
    RAW = 176
    APV, AOP, AAT, AL16 = 84, 85, 89, 90
    WOFF = 91
    def stamp(i):
        if stamps:
            a(f"s_memrealtime s[{80+2*i}:{81+2*i}]")

    a(f"s_cmp_ge_u32 s2, 256\ns_cbranch_scc1 L_end")
    a("s_load_dwordx16 s[40:55], s[0:1], 0")
    a("s_load_dwordx8 s[56:63], s[0:1], 64")
    a("s_mov_b32 s100, 0")
    stamp(0)
    a(f"""
    v_lshrrev_b32 v{T0}, 6, v0
    v_and_b32 v{LANE}, 63, v0
    v_readfirstlane_b32 s3, v{T0}
    v_lshrrev_b32 v{T1}, 4, v{LANE}
    v_and_b32 v{T2}, 15, v0
    v_lshlrev_b32 v{VOFF}, 4, v0
    v_and_b32 v{TT}, 3, v0
    v_lshl_add_u32 v{TT}, v{T1}, 2, v{TT}
    v_lshlrev_b32 v{TT}, 4, v{TT}
    v_lshl_add_u32 v{TT}, v{T0}, 10, v{TT}
    v_bfe_u32 v{TT+1}, v0, 2, 2
    v_lshl_add_u32 v{KOFF}, v{TT+1}, 8, v{TT}
    v_mul_u32_u24 v{TT}, 160, v{T0}
    v_add_u32 v{TT}, v{TT}, v{T1}
    v_lshlrev_b32 v{TT+1}, 4, v{T2}
    v_lshl_add_u32 v{QOFF}, v{TT}, 13, v{TT+1}
    v_lshl_add_u32 v{TT+2}, v{T2}, 2, v{TT}
    v_lshlrev_b32 v{TT+2}, 1, v{TT+2}
    v_lshlrev_b32 v{AL16}, 4, v{LANE}
    v_lshlrev_b32 v{TT+3}, 2, v{LANE}
    {'s_lshr_b32 s4, s2, 3' if badmap else 's_and_b32 s4, s2, 31'}
    {'s_and_b32 s5, s2, 7' if badmap else 's_lshr_b32 s5, s2, 5'}
    s_lshl_b32 s6, s5, 5
    s_add_u32 s6, s6, s4
    s_lshl_b32 s6, s6, 20
    s_add_u32 s6, s6, 0xC0000
    s_mul_i32 s64, s2, {rot*1024}
    s_and_b32 s64, s64, 0x3ffff
    s_mul_i32 s66, s5, 1280
    s_lshl_b32 s7, s4, 8
    s_mov_b32 s10, 0x40000
    s_mov_b32 s11, 0x20000
    s_mov_b32 s14, 0x40000
    s_mov_b32 s15, 0x20000
    s_mov_b32 s26, 10240
    s_mov_b32 s27, 0x20000
    s_sub_u32 s18, {640*8192}, s7
    s_mov_b32 s19, 0x20000
    s_waitcnt lgkmcnt(0)
    s_mov_b32 s24, s40
    s_mov_b32 s25, s41
    s_add_u32 s8, s42, s6
    s_addc_u32 s9, s43, 0
    s_add_u32 s16, s46, s7
    s_addc_u32 s17, s47, 0
    """)
    a.vmem(f"buffer_load_dwordx4 {vr(BIG)}, v{AL16}, s[24:27], s66 offen", "x")
    a.vmem(f"buffer_load_dword v{BIG+4}, v{TT+3}, s[24:27], s66 offen offset:1024", "x")
    for u in range(3):
        a.vmem(f"buffer_load_ushort v{XN+u}, v{TT+2}, s[24:27], s66 offen offset:{u*128}", "x")

    def ldK(i):
        a(f"s_add_u32 s65, s64, {i*4096}\ns_and_b32 s65, s65, 0x3ffff")
        a.vmem(f"buffer_load_dwordx4 {ar(4*i)}, v{KOFF}, s[8:11], s65 offen {kf}", ("k", i))
    st = {"k": 0, "v": 0, "q": 0}
    def ldV(i):
        assert i - st["v"] < NRING and st["q"] == 40
        a(f"s_add_u32 s65, s64, {i*4096}\ns_and_b32 s65, s65, 0x3ffff")
        a.vmem(f"buffer_load_dwordx4 {vr(RING+4*(i%NRING))}, v{VOFF}, s[12:15], s65 offen {vf}", ("v", i))
    def ldQ(t):
        a(f"s_mov_b32 s65, {t*32768}")
        a.vmem(f"buffer_load_dwordx4 {vr(RING+4*(t%NQR))}, v{QOFF}, s[16:19], s65 offen {wf}", ("q", t))
    def ldO(j):
        assert j < st["k"]
        t, G = j // 5, j % 5
        a(f"s_mov_b32 s65, {t*5120}")
        a.vmem(f"buffer_load_dwordx4 {ar(4*j)}, v{OOFF}, s[20:23], s65 offen offset:{G*256} {wf}", ("o", j))
    LD = {"k": ldK, "v": ldV, "q": ldQ, "o": ldO}

    Ks = [("k", i) for i in range(64)]; Qs = [("q", t) for t in range(40)]
    Vs = [("v", i) for i in range(64)]; Os = [("o", j) for j in range(40)]
    seqK = mixseq(Ks, Qs, upto=wq_upto)
    NFIRST = 8
    for x in seqK[:NFIRST]:
        LD[x[0]](x[1])
    a(f"""
    s_add_u32 s12, s44, s6
    s_addc_u32 s13, s45, 0
    s_mul_i32 s7, s4, 163840
    s_add_u32 s20, s48, s7
    s_addc_u32 s21, s49, 0
    s_mov_b32 s22, 163840
    s_mov_b32 s23, 0x20000
    s_mov_b32 s28, s62
    s_mov_b32 s29, s63
    s_mov_b32 s30, {WS_USED}
    s_mov_b32 s31, 0x20000
    s_mov_b32 s36, s58
    s_mov_b32 s37, s59
    s_mov_b32 s38, 10240
    s_mov_b32 s39, 0x20000
    v_lshl_add_u32 v{TT}, v{T0}, 5, v{T1}
    v_mul_u32_u24 v{TT}, 1280, v{TT}
    v_add_u32 v{OOFF}, v{TT}, v{TT+1}
    """)
    a(f"""
    s_cmp_lt_u32 s2, 17
    s_cselect_b32 s7, 0, -1
    s_lshl_b32 s65, s2, 12
    v_mov_b32 v{BIG+8}, s7
    v_mov_b32 v{BIG+9}, s7
    v_mov_b32 v{BIG+10}, s7
    v_mov_b32 v{BIG+11}, s7
    """)
    a.vmem(f"buffer_store_dwordx4 {vr(BIG+8)}, v{VOFF}, s[28:31], s65 offen sc1", "init")
    a(f"""
    v_and_b32 v{TT}, 1, v0
    v_lshlrev_b32 v{TT}, 4, v{TT}
    v_mov_b32 v{TT+1}, 0xffff
    v_lshlrev_b32 v{TT}, v{TT}, v{TT+1}
    v_lshrrev_b32 v{TT+1}, 1, v{T2}
    """)
    for r in range(4):
        a(f"v_cmp_eq_u32 vcc, {r}, v{TT+1}\ns_nop 1\nv_cndmask_b32 v{M+r}, 0, v{TT}, vcc")
    a.need("x")
    X = BIG + 12
    for i in range(5):
        a(f"v_lshlrev_b32 v{X+2*i}, 16, v{BIG+i}\nv_and_b32 v{X+2*i+1}, 0xffff0000, v{BIG+i}")
    a(f"v_add_f32 v{TT}, v{X}, v{X+1}")
    for i in range(2, 10):
        a(f"v_add_f32 v{TT}, v{TT}, v{X+i}")
    allreduce(a, "v_add_f32", TT, TT + 1)
    a(f"v_mul_f32 v{TT}, 0x3acccccd, v{TT}")
    a(f"v_mov_b32 v{TT+2}, 0")
    for i in range(10):
        a(f"v_sub_f32 v{X+i}, v{X+i}, v{TT}\nv_fmac_f32 v{TT+2}, v{X+i}, v{X+i}")
    allreduce(a, "v_add_f32", TT + 2, TT + 1)
    a(f"v_mul_f32 v{TT+2}, 0x3acccccd, v{TT+2}")
    rbf(a, TT, TT)
    rbf(a, TT + 2, TT + 2)
    a(f"v_add_f32 v{TT+2}, 0x3727c5ac, v{TT+2}")
    rbf(a, TT + 2, TT + 2)
    a(f"v_sqrt_f32 v{TT+2}, v{TT+2}\ns_nop 0")
    rbf(a, TT + 2, TT + 2)
    a(f"v_rcp_f32 v{TT+2}, v{TT+2}")
    for u in range(3):
        a(f"v_lshlrev_b32 v{XN+u}, 16, v{XN+u}\nv_sub_f32 v{XN+u}, v{XN+u}, v{TT}")
        rbf(a, XN + u, XN + u)
        a(f"v_mul_f32 v{XN+u}, v{XN+u}, v{TT+2}\nv_cvt_pk_bf16_f32 v{XN+u}, v{XN+u}, v{XN+u}")
    a("s_nop 1")

    def selB(dst, src, lane):
        for r in range(4):
            a(f"v_and_b32_dpp v{dst+r}, v{src}, v{M+r} row_newbcast:{lane} {DPPF}")
    def useQ(t):
        B = BA[t & 1]
        selB(B, XN + (t >> 4), t & 15)
        a.need(("q", t))
        a("s_nop 1")
        c = "0" if t == 0 else vr(D[0])
        a(f"v_mfma_f32_16x16x32_bf16 {vr(D[0])}, {vr(RING+4*(t%NQR))}, {vr(B)}, {c}")
        st["q"] = t + 1

    full = seqK + mixseq(Vs, Os, skip=10, upto=60)
    pos = NFIRST
    qdone = 0
    def issue(n=1):
        nonlocal pos
        for _ in range(n):
            if pos < len(full):
                x = full[pos]; pos += 1
                LD[x[0]](x[1])
    idx = {x: i for i, x in enumerate(full)}
    while qdone < 40:
        while qdone < 40 and idx[("q", qdone)] <= pos - W:
            useQ(qdone); qdone += 1
        if qdone < 40:
            x = full[pos]
            if x[0] == "q":
                assert x[1] - qdone < NQR
            assert x[0] != "v"
            a.window(W + 2)
            issue()
    a(f"""
    v_lshrrev_b32 v{TT}, 4, v{LANE}
    v_and_b32 v{TT+1}, 15, v0
    v_lshl_add_u32 v{TT+2}, v{TT}, 5, v{TT+1}
    v_lshlrev_b32 v{TT+2}, 2, v{TT+2}
    v_and_b32 v{TT+3}, 8, v0
    v_lshl_add_u32 v{TT+2}, v{TT+3}, 8, v{TT+2}
    s_lshl_b32 s7, s3, 9
    v_add_u32 v{TT+2}, s7, v{TT+2}
    v_and_b32 v{TT+3}, 3, v0
    v_lshl_add_u32 v{TT+3}, v{TT}, 2, v{TT+3}
    v_lshlrev_b32 v{TT+3}, 5, v{TT+3}
    """)
    for r in range(4):
        a(f"ds_write_b32 v{TT+2}, v{D[0]+r} offset:{L_Q + r*32}")
    issue()
    a("s_waitcnt lgkmcnt(0)\ns_barrier")
    QP = RAW
    for w in range(4):
        for hf in range(2):
            a(f"ds_read_b128 {vr(QP+8*w+4*hf)}, v{TT+3} offset:{L_Q + w*512 + hf*16}")
    assert "init" not in a.vm
    a(f"""
    s_cmp_lt_u32 s2, 31
    s_cselect_b32 s7, s3, 1
    s_cmp_eq_u32 s7, 0
    s_cbranch_scc0 L_nosig
    s_mov_b32 s7, 1
    s_atomic_add s7, s[60:61], 0x0
    L_nosig:
    s_waitcnt lgkmcnt(0)
    """)
    for j in range(8):
        a(f"v_add_f32 v{QP+j}, v{QP+j}, v{QP+8+j}\nv_add_f32 v{QP+16+j}, v{QP+16+j}, v{QP+24+j}\nv_add_f32 v{QP+j}, v{QP+j}, v{QP+16+j}")
    for j in range(4):
        a(f"v_cvt_pk_bf16_f32 v{QP+j}, v{QP+2*j}, v{QP+2*j+1}")
    for t in range(4):
        m = 0x000F000F << (4 * t)
        a(f"s_mov_b32 s68, {m:#x}\ns_mov_b32 s69, {m:#x}")
        for j in range(4):
            a(f"v_cndmask_b32 v{QB+4*t+j}, 0, v{QP+j}, s[68:69]")
    for s in range(1, 4):
        m = 0x11111111 << s
        a(f"s_mov_b32 s{68+2*s}, {m:#x}\ns_mov_b32 s{69+2*s}, {m:#x}")
    issue()
    stamp(1)
    def post(u):
        Dd = D[u & 1]; dst = P + (u >> 2) if (u & 3) == 0 else TT
        a(f"v_mov_b32_dpp v{TT}, v{Dd} quad_perm:[0,0,0,0] {DPPF}")
        a(f"v_add_f32_dpp v{TT}, v{Dd+1}, v{TT} quad_perm:[1,1,1,1] {DPPF}")
        a(f"v_add_f32_dpp v{TT}, v{Dd+2}, v{TT} quad_perm:[2,2,2,2] {DPPF}")
        a(f"v_add_f32_dpp v{dst}, v{Dd+3}, v{TT} quad_perm:[3,3,3,3] {DPPF}")
        if u & 3:
            s = u & 3
            a(f"v_cndmask_b32 v{P+(u>>2)}, v{P+(u>>2)}, v{TT}, s[{68+2*s}:{69+2*s}]")
        else:
            a("s_nop 0")
    for u in range(16):
        while idx[("k", 4 * u + 3)] > pos - min(W, 7):
            issue()
        a.need(("k", 4 * u + 3))
        for t in range(4):
            c = "0" if t == 0 else vr(D[u & 1])
            a(f"v_mfma_f32_16x16x32_bf16 {vr(D[u&1])}, {ar(16*u+4*t)}, {vr(QB+4*t)}, {c}")
        st["k"] = 4 * u + 4
        if u == 0:
            a("s_nop 4")
        else:
            post(u - 1)
        if u % 3 == 2:
            assert full[pos][0] != "o" or full[pos][1] < 4 * u
            issue()
    a("s_nop 3")
    post(15)
    S = TT + 2
    for i in range(2):
        a(f"v_cvt_pk_bf16_f32 v{TT}, v{P+2*i}, v{P+2*i+1}")
        a(f"v_lshlrev_b32 v{S+2*i}, 16, v{TT}\nv_and_b32 v{S+2*i+1}, 0xffff0000, v{TT}")
        a(f"v_mul_f32 v{S+2*i}, 0x3db504f3, v{S+2*i}\nv_mul_f32 v{S+2*i+1}, 0x3db504f3, v{S+2*i+1}")
        a(f"v_cvt_pk_bf16_f32 v{TT}, v{S+2*i}, v{S+2*i+1}")
        a(f"v_lshlrev_b32 v{S+2*i}, 16, v{TT}\nv_and_b32 v{S+2*i+1}, 0xffff0000, v{TT}")
    MX, LS = TT + 6, TT + 7
    a(f"v_max_f32 v{MX}, v{S}, v{S+1}\nv_max3_f32 v{MX}, v{MX}, v{S+2}, v{S+3}")
    allreduce(a, "v_max_f32", MX, TT)
    issue()
    for i in range(4):
        a(f"v_sub_f32 v{P+i}, v{S+i}, v{MX}\nv_mul_f32 v{P+i}, 0x3fb8aa3b, v{P+i}\nv_exp_f32 v{P+i}, v{P+i}")
    a(f"s_nop 0\nv_add_f32 v{LS}, v{P}, v{P+1}\nv_add_f32 v{TT}, v{P+2}, v{P+3}\nv_add_f32 v{LS}, v{LS}, v{TT}")
    allreduce(a, "v_add_f32", LS, TT)
    a(f"s_lshl_b32 s7, s3, 3\nv_mov_b32 v{TT}, s7\nds_write_b64 v{TT}, v[{MX}:{LS}] offset:{L_ML}")
    issue()
    a(f"s_waitcnt lgkmcnt(0)\ns_barrier\nv_mov_b32 v{TT}, 0")
    ML = BIG
    a(f"ds_read_b128 {vr(ML)}, v{TT} offset:{L_ML}\nds_read_b128 {vr(ML+4)}, v{TT} offset:{L_ML+16}")
    issue()
    a("s_waitcnt lgkmcnt(0)")
    a(f"v_max_f32 v{MX}, v{ML}, v{ML+2}\nv_max3_f32 v{MX}, v{MX}, v{ML+4}, v{ML+6}")
    for w in range(4):
        a(f"v_sub_f32 v{ML+2*w}, v{ML+2*w}, v{MX}\nv_mul_f32 v{ML+2*w}, 0x3fb8aa3b, v{ML+2*w}\nv_exp_f32 v{ML+2*w}, v{ML+2*w}")
    for i in range(4):
        a(f"v_sub_f32 v{P+i}, v{S+i}, v{MX}\nv_mul_f32 v{P+i}, 0x3fb8aa3b, v{P+i}\nv_exp_f32 v{P+i}, v{P+i}")
    a(f"v_mul_f32 v{LS}, v{ML}, v{ML+1}")
    for w in range(1, 4):
        a(f"v_fmac_f32 v{LS}, v{ML+2*w}, v{ML+2*w+1}")
    a(f"v_rcp_f32 v{LS}, v{LS}\ns_nop 0")
    PP = XN - 0
    for i in range(4):
        a(f"v_mul_f32 v{P+i}, v{P+i}, v{LS}")
    for i in range(4):
        a(f"v_cvt_pk_bf16_f32 v{P+i}, v{P+i}, v{P+i}")
    stamp(2)
    a(f"""
    v_lshrrev_b32 v{T1}, 4, v{LANE}
    v_and_b32 v{TT}, 1, v0
    v_lshl_add_u32 v{TT}, v{TT}, 2, v{T1}
    s_lshl_b32 s7, s3, 4
    v_add_u32 v{TT}, s7, v{TT}
    v_bfe_u32 v{TT+1}, v0, 1, 2
    v_lshlrev_b32 v{TT+1}, 2, v{TT+1}
    v_lshl_add_u32 v{APV}, v{TT}, 4, v{TT+1}
    v_bfe_u32 v{TT}, v0, 2, 5
    v_mul_u32_u24 v{TT}, 20, v{TT}
    v_lshrrev_b32 v{TT+1}, 7, v0
    v_mul_u32_u24 v{TT+1}, 3, v{TT+1}
    v_and_b32 v{TT+2}, 3, v0
    v_add3_u32 v{TT}, v{TT}, v{TT+1}, v{TT+2}
    v_lshlrev_b32 v{AAT}, 2, v0
    """)
    for k in range(4):
        a(f"""
        v_add_u32 v{TT+1}, {6*k}, v{TT}
        v_lshrrev_b32 v{TT+2}, 5, v{TT+1}
        v_lshlrev_b32 v{TT+2}, 8, v{TT+2}
        v_and_b32 v{TT+3}, 7, v{TT+1}
        v_lshl_add_u32 v{TT+2}, v{TT+3}, 4, v{TT+2}
        v_bfe_u32 v{TT+3}, v{TT+1}, 3, 2
        v_lshl_add_u32 v{AOP+k}, v{TT+3}, 2, v{TT+2}
        """)
    a(f"""
    s_and_b32 s70, s2, 7
    s_lshr_b32 s71, s2, 3
    s_min_u32 s72, s70, 3
    s_mul_i32 s73, s70, 3
    s_add_u32 s73, s73, s72
    s_cmp_lt_u32 s70, 3
    s_cselect_b32 s72, 4, 3
    s_lshl_b32 s7, s70, 8
    s_add_u32 s7, s7, {TICK}
    s_add_u32 s74, s62, s7
    s_addc_u32 s75, s63, 0
    s_mul_i32 s67, s5, {ACC1_B}
    s_mov_b32 s68, 0x88888888
    s_mov_b32 s69, 0x88888888
    """)

    def usePV(i):
        B = BA[i & 1]; u, t = i >> 2, i & 3
        selB(B, P + (u >> 2), 4 * t + (u & 3))
        a.need(("v", i))
        a("s_nop 1")
        c = "0" if i == 0 else vr(D[0])
        a(f"v_mfma_f32_16x16x32_bf16 {vr(D[0])}, {vr(RING+4*(i%NRING))}, {vr(B)}, {c}")
        st["v"] = i + 1
    vdone = 0
    checked = False
    while pos < len(full):
        n = 0
        while vdone < 64 - tailW and idx[("v", vdone)] <= pos - W and n < 3:
            usePV(vdone); vdone += 1; n += 1
        x = full[pos]
        if x[0] == "v":
            while x[1] - vdone >= NRING:
                usePV(vdone); vdone += 1
        a.window(W + 6)
        issue()
        if x == ("v", 36):
            a(f"v_mov_b32 v{TT+1}, 0")
            a.vmem(f"global_load_dword v{TT}, v{TT+1}, s[60:61] sc1", "ichk")
        if x == ("v", 48):
            a.need("ichk")
            a(f"""
            L_ichk:
            v_cmp_gt_u32 vcc, 31, v{TT}
            s_cbranch_vccz L_iok
            {spin()}
            global_load_dword v{TT}, v{TT+1}, s[60:61] sc1
            s_waitcnt vmcnt(0)
            s_branch L_ichk
            L_iok:
            """)
    while vdone < 64 - tailW:
        usePV(vdone); vdone += 1
    stamp(3)
    a(f"""
    s_lshl_b32 s7, s72, 1
    s_cmp_lt_u32 s71, s7
    s_cbranch_scc1 L_roleG
    s_sub_u32 s77, s71, 8
    s_cmp_lt_u32 s77, 10
    s_cbranch_scc1 L_roleD
    """)
    vm0 = list(a.vm)

    def att_tail(name, pre):
        a.vm = list(vm0)
        pre = list(pre)
        per = (len(pre) + tailW - 1) // tailW
        for i in range(64 - tailW, 64):
            usePV(i)
            if i < 63:
                for _ in range(per):
                    if pre: pre.pop(0)()
        for j in range(40):
            assert ("o", j) not in a.vm
        a(f"s_lshl_b32 s7, s3, 10\nv_add_u32 v{TT}, s7, v{AL16}\ns_mul_i32 s7, s3, 5120\nv_add_u32 v{T2}, s7, v{AL16}")
        a("s_nop 3")
        a(f"ds_write_b128 v{TT}, {vr(D[0])} offset:{L_PV}")
        a("s_waitcnt lgkmcnt(0)\ns_barrier")
        assert L_PV % 256 == 0
        o = L_PV // 256
        a(f"ds_read2st64_b32 v[{BA[0]}:{BA[0]+1}], v{APV} offset0:{o} offset1:{o+4}")
        a(f"ds_read2st64_b32 v[{BA[0]+2}:{BA[0]+3}], v{APV} offset0:{o+8} offset1:{o+12}")
        for f in pre: f()
        a("s_waitcnt lgkmcnt(0)")
        stamp(4)
        a(f"""
        v_add_f32 v{BA[0]}, v{BA[0]}, v{BA[0]+1}
        v_add_f32 v{BA[0]+2}, v{BA[0]+2}, v{BA[0]+3}
        s_mov_b32 s76, 1
        v_add_f32 v{BA[0]}, v{BA[0]}, v{BA[0]+2}
        s_cmp_eq_u32 s3, 0
        v_cvt_pk_bf16_f32 v{T0}, v{BA[0]}, v{BA[0]}
        s_cbranch_scc0 L_notick{name}
        s_atomic_add s76, s[74:75], 0x0 glc
        L_notick{name}:
        s_nop 0
        """)
        OB = QB; OD = BIG
        selB(OB, T0, 0)
        order = [(t, G) for t in range(6) for G in range(5)] + [(t, G) for G in range(5) for t in (6, 7)]
        pend = [(t, r) for t in range(1, 8) for r in range(4)]
        a("s_nop 1")
        lastm = {}
        wr = 0
        for n, (t, G) in enumerate(order):
            c = "0" if t == 0 else vr(OD + 4 * G)
            a(f"v_mfma_f32_16x16x32_bf16 {vr(OD+4*G)}, {ar(4*(5*t+G))}, {vr(OB+4*t)}, {c}")
            if pend and not (n % 5 >= 3 and pend[0][0] == t + 1):
                k = 2 if (n % 5 == 0 and n < 5) or pend[0][0] == t + 1 else 1
                for _ in range(k):
                    if pend:
                        tt, r = pend.pop(0)
                        a(f"v_and_b32_dpp v{OB+4*tt+r}, v{T0}, v{M+r} row_newbcast:{tt} {DPPF}")
        assert not pend
        a(f"ds_write_b128 v{T2}, {vr(OD)} offset:{L_OP}")
        a("s_nop 0")
        a(f"ds_write_b128 v{T2}, {vr(OD+4)} offset:{L_OP+1024}")
        a("s_nop 0")
        a(f"ds_write_b128 v{T2}, {vr(OD+8)} offset:{L_OP+2048}")
        a("s_nop 0")
        a(f"ds_write_b128 v{T2}, {vr(OD+12)} offset:{L_OP+3072}")
        a("s_nop 0")
        a(f"ds_write_b128 v{T2}, {vr(OD+16)} offset:{L_OP+4096}")
        a(f"""
        s_waitcnt lgkmcnt(0)
        s_cmp_eq_u32 s76, 31
        s_cbranch_scc0 L_noflag{name}
        v_lshlrev_b32 v{T0}, 8, v{LANE}
        v_mov_b32 v{T1}, 1
        s_lshl_b32 s7, s70, 2
        s_add_u32 s7, s7, {FLAGS}
        s_mov_b64 exec, 0xffff
        buffer_store_dword v{T1}, v{T0}, s[28:31], s7 offen sc1
        s_mov_b64 exec, -1
        L_noflag{name}:
        s_barrier
        """)
        a.vm.append("maybe")
        o = L_OP // 256
        R = QB
        for k in range(4):
            a(f"ds_read2st64_b32 v[{R+4*k}:{R+4*k+1}], v{AOP+k} offset0:{o} offset1:{o+20}")
            a(f"ds_read2st64_b32 v[{R+4*k+2}:{R+4*k+3}], v{AOP+k} offset0:{o+40} offset1:{o+60}")
        for k in range(4):
            if k == 3:
                a(f"s_cmp_ge_u32 s3, 2\ns_cbranch_scc1 L_no3{name}")
            a(f"s_waitcnt lgkmcnt({6-2*k})")
            a(f"v_add_f32 v{R+4*k}, v{R+4*k}, v{R+4*k+1}\nv_add_f32 v{R+4*k+2}, v{R+4*k+2}, v{R+4*k+3}\nv_add_f32 v{R+4*k}, v{R+4*k}, v{R+4*k+2}")
            a(f"v_cndmask_b32 v{R+4*k}, v{R+4*k}, 1.0, s[68:69]")
            a(f"buffer_atomic_add_f32 v{R+4*k}, v{AAT}, s[28:31], s67 offen offset:{ACC1 + k*1024}")
        a(f"L_no3{name}:")
        a("s_waitcnt lgkmcnt(0)")
        stamp(5)

    def transpose(src, dst):
        for t in range(4):
            for p in range(4):
                sel = "s78" if t & 1 else "s79"
                a(f"v_perm_b32 v{dst+4*t+p}, v{src+2*(2*p+1)+(t>>1)}, v{src+2*(2*p)+(t>>1)}, {sel}")

    def write_stamps():
        if stamps:
            a("s_waitcnt vmcnt(0)")
            stamp(9)
            a("s_waitcnt lgkmcnt(0)")
            for i in range(10):
                a(f"v_mov_b32 v{BIG+i}, s{80+2*i}")
            a(f"s_getreg_b32 s7, hwreg(HW_REG_XCC_ID)\nv_mov_b32 v{BIG+10}, s7\nv_mov_b32 v{BIG+11}, s79")
            a(f"s_lshl_b32 s7, s2, 2\ns_add_u32 s7, s7, s3\ns_lshl_b32 s7, s7, 6\ns_add_u32 s7, s7, {STAMP}\nv_mov_b32 v{T0}, s7")
            for i in range(3):
                a(f"global_store_dwordx4 v{T0}, {vr(BIG+4*i)}, s[62:63] offset:{16*i}")

    att_tail("N", [])
    if stamps:
        a("s_mov_b32 s92, 0\ns_mov_b32 s94, 0\ns_mov_b32 s96, 0\ns_mov_b32 s79, 0")
    write_stamps()
    a("s_endpgm")

    a("L_roleG:")
    a(f"""
    s_lshr_b32 s7, s71, 1
    s_add_u32 s73, s73, s7
    s_and_b32 s77, s71, 1
    s_cmp_eq_u32 s77, 0
    s_cselect_b32 s32, s52, s54
    s_cselect_b32 s33, s53, s55
    s_mov_b32 s34, {640*3456}
    s_mov_b32 s35, 0x20000
    v_lshrrev_b32 v{T1}, 4, v{LANE}
    v_mul_u32_u24 v{T1}, {8*3456}, v{T1}
    v_and_b32 v{T0}, 15, v0
    v_lshl_add_u32 v{T1}, v{T0}, 3, v{T1}
    s_mul_i32 s7, s3, {160*3456}
    s_lshl_b32 s65, s73, 7
    s_add_u32 s7, s7, s65
    v_add_u32 v{WOFF}, s7, v{T1}
    """)
    def ldG(n):
        s, jj = n // 8, n % 8
        def f():
            a(f"s_mov_b32 s65, {(32*s+jj)*3456}")
            a.vmem(f"buffer_load_dwordx2 {vr(RAW+2*n, 2)}, v{WOFF}, s[32:35], s65 offen {ff}", ("g", n))
        return f
    att_tail("G", [ldG(n) for n in range(16)])
    for n in range(16, 40):
        ldG(n)()
    XR = QB
    AX, AA, AH, AF, AG = 2, 3, 4, 5, 12
    a(f"""
    v_lshrrev_b32 v{T0}, 5, v0
    v_and_b32 v{T1}, 31, v0
    v_mul_u32_u24 v{T2}, 40, v{T1}
    v_mul_u32_u24 v{AX}, 1280, v{T0}
    v_add_u32 v{AX}, v{AX}, v{T2}
    v_mul_u32_u24 v{AH}, {HN_STR}, v{T0}
    v_add_u32 v{AH}, v{AH}, v{T2}
    v_mul_u32_u24 v{AA}, {ACC1_B}, v{T0}
    v_lshl_add_u32 v{AA}, v{T1}, 4, v{AA}
    """)
    for i in range(5):
        a.vmem(f"buffer_load_dwordx2 {vr(XR+2*i, 2)}, v{AX}, s[24:27], 0 offen offset:{8*i}", "xr")
    a(f"""
    v_and_b32 v{T0}, 7, v0
    v_mul_u32_u24 v{AF}, {HN_STR}, v{T0}
    v_lshrrev_b32 v{T1}, 4, v{LANE}
    v_lshl_add_u32 v{AF}, v{T1}, 4, v{AF}
    s_mul_i32 s7, s3, 320
    v_add_u32 v{AF}, s7, v{AF}
    v_bfe_u32 v{T0}, v0, 5, 1
    v_lshlrev_b32 v{T0}, 3, v{T0}
    s_lshl_b32 s7, s3, 1
    v_bfe_u32 v{T1}, v0, 1, 1
    v_add3_u32 v{T0}, v{T0}, s7, v{T1}
    v_bfe_u32 v{T1}, v0, 4, 1
    v_lshl_add_u32 v{T0}, v{T1}, 4, v{T0}
    v_lshlrev_b32 v{T0}, 4, v{T0}
    v_and_b32 v{T1}, 12, v0
    v_add_u32 v{T0}, v{T0}, v{T1}
    v_and_b32 v{T1}, 1, v0
    v_lshl_add_u32 v{AG}, v{T1}, 11, v{T0}
    s_lshl_b32 s7, s3, 12
    v_add_u32 v13, s7, v{AL16}
    s_mov_b32 s78, 0x07060302
    s_mov_b32 s79, 0x05040100
    v_and_b32 v14, 7, v0
    v_lshlrev_b32 v14, 2, v14
    s_mul_i32 s76, s77, 27
    s_add_u32 s76, s76, s73
    s_and_b32 s7, {'s76' if fpoll == 's' else 's2'}, 15
    s_lshl_b32 s7, s7, 8
    s_add_u32 s7, s7, {FLAGS}
    s_add_u32 s74, s62, s7
    s_addc_u32 s75, s63, 0
    s_lshl_b32 s76, s76, 10
    s_add_u32 s76, s76, {SU}
    """)
    WT = RING
    younger = 24 + 5
    a(f"s_waitcnt vmcnt({younger})")
    transpose(RAW, WT); transpose(RAW + 16, WT + 16)
    for s in range(2, 5):
        a(f"s_waitcnt vmcnt({(4-s)*8+5})")
        transpose(RAW + 16 * s, WT + 16 * s)
    a("s_waitcnt vmcnt(0)")
    a.vm = []
    XF = RAW + 32
    for i in range(10):
        a(f"v_lshlrev_b32 v{XF+2*i}, 16, v{XR+i}\nv_and_b32 v{XF+2*i+1}, 0xffff0000, v{XR+i}")
    AC = RAW
    a("s_mov_b32 s79, 0")
    a(f"s_mov_b32 s66, {1 if dry else 0}")
    if dry:
        a("s_branch L_Gbody")
    if fpoll == 's':
        POLL = """s_load_dwordx8 s[40:47], s[74:75], 0x0 glc
        s_waitcnt lgkmcnt(0)
        s_and_b32 s40, s40, s41
        s_and_b32 s42, s42, s43
        s_and_b32 s44, s44, s45
        s_and_b32 s46, s46, s47
        s_and_b32 s40, s40, s42
        s_and_b32 s44, s44, s46
        s_and_b32 s40, s40, s44
        s_cbranch_scc0 L_Gpoll"""
    else:
        POLL = f"""global_load_dword v{T1}, v14, s[74:75] sc1
        s_waitcnt vmcnt(0)
        v_cmp_eq_u32 vcc, 0, v{T1}
        s_cbranch_vccnz L_Gpoll"""
    a("L_Gwait:")
    a(f"""
    s_cmp_eq_u32 s3, 0
    s_cbranch_scc0 L_Gbar
    L_Gpoll:
    {spin()}
    {POLL}
    L_Gbar:
    s_barrier
    """)
    stamp(6)
    a("L_Gread:")
    a(spin())
    for i in range(7):
        a(f"buffer_load_dwordx4 {vr(AC+4*i)}, v{AA}, s[28:31], 0 offen offset:{ACC1 + 512*i} sc1")
    if stamps:
        a("s_add_u32 s79, s79, 1")
    a(f"""
    s_waitcnt vmcnt(0)
    v_min3_f32 v{T0}, v{AC+3}, v{AC+7}, v{AC+11}
    v_min3_f32 v{T1}, v{AC+15}, v{AC+19}, v{AC+23}
    v_min3_f32 v{T0}, v{T0}, v{T1}, v{AC+27}
    v_cmp_neq_f32 vcc, 0x42000000, v{T0}
    s_cbranch_vccnz L_Gread
    """)
    stamp(7)
    a("L_Gbody:")
    H = RAW + 52
    val = [AC + 4 * (e // 3) + e % 3 for e in range(20)]
    for i in range(10):
        a(f"v_cvt_pk_bf16_f32 v{T0}, v{val[2*i]}, v{val[2*i+1]}")
        a(f"v_lshlrev_b32 v{H+2*i}, 16, v{T0}\nv_and_b32 v{H+2*i+1}, 0xffff0000, v{T0}")
        a(f"v_pk_add_f32 {vr(H+2*i,2)}, {vr(H+2*i,2)}, {vr(XF+2*i,2)}")
        a(f"v_cvt_pk_bf16_f32 v{T0}, v{H+2*i}, v{H+2*i+1}")
        a(f"v_lshlrev_b32 v{H+2*i}, 16, v{T0}\nv_and_b32 v{H+2*i+1}, 0xffff0000, v{T0}")
        if i == 1:
            a(f"v_pk_add_f32 {vr(TT,2)}, {vr(H,2)}, {vr(H+2,2)}")
        elif i > 1:
            a(f"v_pk_add_f32 {vr(TT,2)}, {vr(TT,2)}, {vr(H+2*i,2)}")
    a(f"v_add_f32 v{TT}, v{TT}, v{TT+1}")
    allreduce(a, "v_add_f32", TT, TT + 1, rows=2)
    a(f"v_mul_f32 v{TT}, 0xbacccccd, v{TT}")
    rbf(a, TT + 2, TT)
    for i in range(10):
        a(f"v_pk_add_f32 {vr(TT+4,2)}, {vr(H+2*i,2)}, {vr(TT,2)} op_sel_hi:[1,0]")
        if i == 0:
            a(f"v_pk_mul_f32 {vr(TT+6,2)}, {vr(TT+4,2)}, {vr(TT+4,2)}")
        else:
            a(f"v_pk_fma_f32 {vr(TT+6,2)}, {vr(TT+4,2)}, {vr(TT+4,2)}, {vr(TT+6,2)}")
    a(f"v_add_f32 v{TT+6}, v{TT+6}, v{TT+7}")
    steps = ["quad_perm:[1,0,3,2]", "quad_perm:[2,3,0,1]", "row_half_mirror", "row_mirror"]
    for i in range(10):
        a(f"v_pk_add_f32 {vr(H+2*i,2)}, {vr(H+2*i,2)}, {vr(TT+2,2)} op_sel_hi:[1,0]")
        a(f"v_cvt_pk_bf16_f32 v{T0}, v{H+2*i}, v{H+2*i+1}")
        a(f"v_lshlrev_b32 v{H+2*i}, 16, v{T0}\nv_and_b32 v{H+2*i+1}, 0xffff0000, v{T0}")
        V_ = TT + 6
        if i < 4:
            a(f"v_add_f32_dpp v{V_}, v{V_}, v{V_} {steps[i]} {DPPF}")
            if i == 3:
                a(f"v_mov_b32 v{V_+1}, v{V_}")
        elif i == 4:
            a(f"v_permlane16_swap_b32 v{V_}, v{V_+1}")
        elif i == 5:
            a(f"v_add_f32 v{V_}, v{V_}, v{V_+1}\nv_mul_f32 v{V_}, 0x3acccccd, v{V_}")
            rbf(a, V_, V_)
            a(f"v_add_f32 v{V_}, 0x3727c5ac, v{V_}")
            rbf(a, V_, V_)
            a(f"v_sqrt_f32 v{V_}, v{V_}")
        elif i == 6:
            rbf(a, V_, V_)
            a(f"v_rcp_f32 v{V_}, v{V_}")
    HP = AC
    for i in range(10):
        a(f"v_pk_mul_f32 {vr(H+2*i,2)}, {vr(H+2*i,2)}, {vr(TT+6,2)} op_sel_hi:[1,0]")
        a(f"v_cvt_pk_bf16_f32 v{HP+i}, v{H+2*i}, v{H+2*i+1}")
        if i & 1:
            a(f"ds_write_b64 v{AH}, {vr(HP+i-1,2)} offset:{L_HN + 4*(i-1)}")
    a("s_waitcnt lgkmcnt(0)\ns_barrier")
    FA = BIG
    for s in range(5):
        a(f"ds_read_b128 {vr(FA+4*s)}, v{AF} offset:{L_HN + 64*s}")
    GD = QB
    for s in range(5):
        a(f"s_waitcnt lgkmcnt({4-s})")
        for t in range(4):
            c = "0" if s == 0 else vr(GD + 4 * t)
            a(f"v_mfma_f32_16x16x32_bf16 {vr(GD+4*t)}, {vr(FA+4*s)}, {vr(WT+16*s+4*t)}, {c}")
    a("s_nop 4")
    for t in range(4):
        a(f"ds_write_b128 v13, {vr(GD+4*t)} offset:{L_GP + 1024*t}")
    a("s_waitcnt lgkmcnt(0)\ns_barrier")
    o = L_GP // 256
    for w in range(4):
        a(f"ds_read2st64_b32 {vr(FA+2*w,2)}, v{AG} offset0:{o+16*w} offset1:{o+16*w+4}")
    a(f"""
    s_cmp_eq_u32 s77, 0
    s_waitcnt lgkmcnt(2)
    v_pk_add_f32 {vr(FA,2)}, {vr(FA,2)}, {vr(FA+2,2)}
    s_waitcnt lgkmcnt(0)
    v_pk_add_f32 {vr(FA+4,2)}, {vr(FA+4,2)}, {vr(FA+6,2)}
    v_pk_add_f32 {vr(FA,2)}, {vr(FA,2)}, {vr(FA+4,2)}
    v_cvt_pk_bf16_f32 v{T0}, v{FA}, v{FA+1}
    s_cbranch_scc0 L_Gup
    v_lshlrev_b32 v{FA}, 16, v{T0}
    v_and_b32 v{FA+1}, 0xffff0000, v{T0}
    v_mul_f32 v{FA}, 0xbfb8aa3b, v{FA}
    v_mul_f32 v{FA+1}, 0xbfb8aa3b, v{FA+1}
    v_exp_f32 v{FA}, v{FA}
    v_exp_f32 v{FA+1}, v{FA+1}
    s_nop 0
    v_add_f32 v{FA}, 1.0, v{FA}
    v_add_f32 v{FA+1}, 1.0, v{FA+1}
    v_rcp_f32 v{FA}, v{FA}
    v_rcp_f32 v{FA+1}, v{FA+1}
    s_nop 0
    v_cvt_pk_bf16_f32 v{T0}, v{FA}, v{FA+1}
    L_Gup:
    v_min_u32 v{T0}, -2, v{T0}
    s_cmp_eq_u32 s66, 0
    s_mov_b32 s66, 0
    s_cbranch_scc0 L_Gwait
    buffer_store_dword v{T0}, v{AAT}, s[28:31], s76 offen
    """)
    stamp(8)
    a(f"""
    s_waitcnt vmcnt(0)
    {'s_sleep %d' % slp if slp else ''}
    buffer_store_dword v{T0}, v{AAT}, s[28:31], s76 offen sc1
    """)
    write_stamps()
    a("s_endpgm")

    a("L_roleD:")
    a(f"""
    s_mov_b32 s32, s56
    s_mov_b32 s33, s57
    s_mov_b32 s34, {1728*1280}
    s_mov_b32 s35, 0x20000
    v_lshrrev_b32 v{T1}, 4, v{LANE}
    v_mul_u32_u24 v{T1}, {8*1280}, v{T1}
    v_and_b32 v{T0}, 15, v0
    v_lshl_add_u32 v{T1}, v{T0}, 3, v{T1}
    s_add_u32 s73, s73, s3
    s_mul_i32 s7, s73, {64*1280}
    s_lshl_b32 s65, s77, 7
    s_add_u32 s7, s7, s65
    s_cmp_lt_u32 s3, s72
    s_cselect_b32 s7, s7, 0x1000000
    v_add_u32 v{WOFF}, s7, v{T1}
    """)
    def ldD(n):
        s, jj = n // 8, n % 8
        def f():
            a(f"s_mov_b32 s65, {(32*s+jj)*1280}")
            a.vmem(f"buffer_load_dwordx2 {vr(RAW+2*n, 2)}, v{WOFF}, s[32:35], s65 offen {ff}", ("d", n))
        return f
    att_tail("D", [ldD(n) for n in range(16)])
    AD, AO, AA1 = 2, 5, 12
    XD = 92
    a(f"""
    v_lshrrev_b32 v{T0}, 2, v0
    v_mul_u32_u24 v{T0}, 3, v{T0}
    v_and_b32 v{T1}, 3, v0
    v_min_u32 v{T1}, 2, v{T1}
    v_add_u32 v{T0}, v{T0}, v{T1}
    v_lshrrev_b32 v{T1}, 6, v{T0}
    v_and_b32 v{T0}, 63, v{T0}
    v_and_b32 v{T2}, 3, v{T0}
    v_lshlrev_b32 v{T2}, 10, v{T2}
    v_lshrrev_b32 v{TT}, 2, v{T0}
    v_lshl_add_u32 v{T2}, v{TT}, 4, v{T2}
    """)
    for k in range(3):
        a(f"""
        v_add_u32 v{TT}, {3*k}, v{T1}
        v_lshrrev_b32 v{TT+1}, 2, v{TT}
        v_lshl_add_u32 v{TT+1}, v{TT+1}, 8, v{T2}
        v_and_b32 v{TT}, 3, v{TT}
        v_lshl_add_u32 v{AD+k}, v{TT}, 2, v{TT+1}
        """)
    a(f"""
    s_lshl_b32 s7, s77, 6
    v_add_u32 v{T0}, s7, v{T0}
    v_mul_u32_u24 v{AO}, 640, v{T1}
    v_add_lshl_u32 v{AO}, v{AO}, v{T0}, 1
    v_mul_u32_u24 v{TT}, 3277, v{T0}
    v_lshrrev_b32 v{TT}, 16, v{TT}
    v_mul_u32_u24 v{TT+1}, 20, v{TT}
    v_sub_u32 v{TT+1}, v{T0}, v{TT+1}
    v_mul_u32_u24 v{TT+2}, 86, v{TT+1}
    v_lshrrev_b32 v{TT+2}, 8, v{TT+2}
    v_mul_u32_u24 v{TT+3}, 3, v{TT+2}
    v_sub_u32 v{TT+3}, v{TT+1}, v{TT+3}
    v_lshl_add_u32 v{TT}, v{TT+2}, 5, v{TT}
    v_lshlrev_b32 v{TT}, 4, v{TT}
    v_lshl_add_u32 v{TT}, v{TT+3}, 2, v{TT}
    v_mul_u32_u24 v{AA1}, {ACC1_B}, v{T1}
    v_add_u32 v{AA1}, v{AA1}, v{TT}
    s_lshl_b32 s7, s3, 12
    v_add_u32 v13, s7, v{AL16}
    s_mov_b32 s78, 0x07060302
    s_mov_b32 s79, 0x05040100
    s_lshl_b32 s76, s73, 10
    s_add_u32 s76, s76, {SU}
    s_add_u32 s74, s76, {27*1024}
    s_mul_i32 s75, s77, 3072
    s_add_u32 s75, s75, {ACC3}
    s_mov_b32 s40, {3*1280}
    s_mov_b32 s41, {6*1280}
    s_mov_b32 s42, {3*ACC1_B}
    s_mov_b32 s43, {6*ACC1_B}
    v_cmp_gt_u32 s[44:45], 0xac, v0
    """.replace("v_cmp_gt_u32 s[44:45], 0xac, v0", "v_cmp_gt_u32 vcc, 0xac, v0\ns_mov_b64 s[44:45], vcc\nv_cmp_gt_u32 vcc, 0xaa, v0\ns_mov_b64 s[52:53], vcc\nv_or_b32 v14, 12, v12"))
    for k in range(3):
        so = ["0", "s40", "s41"][k]
        a(f"buffer_load_ushort v{XD+k}, v{AO}, s[24:27], {so} offen")
    a("s_waitcnt vmcnt(0)")
    a.vm = []
    WT = RING
    transpose(RAW, WT); transpose(RAW + 16, WT + 16)
    for k in range(3):
        a(f"v_lshlrev_b32 v{XD+k}, 16, v{XD+k}")
    SG, UU = BIG, BIG + 4
    a("s_mov_b32 s79, 0")
    a(f"s_mov_b32 s66, {1 if dry else 0}")
    for j in range(8):
        a(f"v_mov_b32 v{SG+j}, 0")
    if dry:
        a("s_branch L_Dbody")
    a("L_Dwait:")
    stamp(6)
    a(f"""
    s_cmp_lt_u32 s3, s72
    s_cbranch_scc0 L_Dbody
    L_Dpoll:
    {spin()}
    buffer_load_dwordx4 {vr(SG)}, v{AL16}, s[28:31], s76 offen sc1
    buffer_load_dwordx4 {vr(UU)}, v{AL16}, s[28:31], s74 offen sc1
    s_waitcnt vmcnt(0)
    v_max3_u32 v{T0}, v{SG}, v{SG+1}, v{SG+2}
    v_max3_u32 v{T1}, v{SG+3}, v{UU}, v{UU+1}
    v_max3_u32 v{T0}, v{T0}, v{UU+2}, v{UU+3}
    v_max_u32 v{T0}, v{T0}, v{T1}
    v_cmp_eq_u32 vcc, -1, v{T0}
    s_cbranch_vccnz L_Dpoll
    """)
    a("L_Dbody:")
    stamp(7)
    HA = BIG + 8; HB = BIG + 12
    for j in range(4):
        a(f"""
        v_lshlrev_b32 v{TT}, 16, v{SG+j}
        v_and_b32 v{TT+1}, 0xffff0000, v{SG+j}
        v_lshlrev_b32 v{TT+2}, 16, v{UU+j}
        v_and_b32 v{TT+3}, 0xffff0000, v{UU+j}
        v_pk_mul_f32 {vr(TT,2)}, {vr(TT,2)}, {vr(TT+2,2)}
        v_cvt_pk_bf16_f32 v{HA+j}, v{TT}, v{TT+1}
        """)
    for j in range(3):
        a(f"v_mov_b32_dpp v{HB+j}, v{HA+j} row_ror:8 {DPPF}")
    a(f"v_mov_b32_dpp v{HB+3}, v{HA+3} row_ror:8 {DPPF}")
    GD = QB
    for s in range(2):
        for t in range(4):
            c = "0" if s == 0 else vr(GD + 4 * t)
            a(f"v_mfma_f32_16x16x32_bf16 {vr(GD+4*t)}, {vr(HB if s else HA)}, {vr(WT+16*s+4*t)}, {c}")
    a("s_nop 4")
    for t in range(4):
        a(f"ds_write_b128 v13, {vr(GD+4*t)} offset:{L_GP + 1024*t}")
    a("s_waitcnt lgkmcnt(0)\ns_barrier")
    R = RAW
    for k in range(3):
        a(f"ds_read2st64_b32 {vr(R+4*k,2)}, v{AD+k} offset0:{o} offset1:{o+16}")
        a(f"ds_read2st64_b32 {vr(R+4*k+2,2)}, v{AD+k} offset0:{o+32} offset1:{o+48}")
    for k in range(3):
        a(f"s_waitcnt lgkmcnt({4-2*k})")
        a(f"v_add_f32 v{R+4*k}, v{R+4*k}, v{R+4*k+1}\nv_add_f32 v{R+4*k+2}, v{R+4*k+2}, v{R+4*k+3}\nv_add_f32 v{R+4*k}, v{R+4*k}, v{R+4*k+2}")
        a(f"v_cndmask_b32 v{R+4*k+1}, v{R+4*k}, 1.0, s[68:69]")
    a(f"""
    s_cmp_eq_u32 s66, 0
    s_cbranch_scc0 L_Dskip
    buffer_atomic_add_f32 v{R+1}, v{AAT}, s[28:31], s75 offen sc0
    buffer_atomic_add_f32 v{R+5}, v{AAT}, s[28:31], s75 offen offset:1024 sc0
    s_cmp_ge_u32 s3, 3
    s_cbranch_scc1 L_Dno2
    s_mov_b64 exec, s[44:45]
    buffer_atomic_add_f32 v{R+9}, v{AAT}, s[28:31], s75 offen offset:2048 sc0
    s_mov_b64 exec, -1
    L_Dno2:
    {spin()}
    buffer_load_dword v{R+3}, v14, s[28:31], 0 offen sc1
    buffer_load_dword v{R+7}, v14, s[28:31], s42 offen sc1
    buffer_load_dword v{R+11}, v14, s[28:31], s43 offen sc1
    buffer_load_dword v{R+2}, v{AA1}, s[28:31], 0 offen sc1
    buffer_load_dword v{R+6}, v{AA1}, s[28:31], s42 offen sc1
    buffer_load_dword v{R+10}, v{AA1}, s[28:31], s43 offen sc1
    s_waitcnt vmcnt(0)
    v_cndmask_b32 v{R+11}, v{R+7}, v{R+11}, s[52:53]
    v_min3_f32 v{R+3}, v{R+3}, v{R+7}, v{R+11}
    v_cmp_neq_f32 vcc, 0x42000000, v{R+3}
    s_cbranch_vccnz L_Dno2
    L_Dskip:
    """)
    stamp(8)
    for k in range(3):
        r = R + 4 * k
        a(f"""
        v_mov_b32_dpp v{r+3}, v{r+1} quad_perm:[3,3,3,3] {DPPF}
        v_add_f32 v{r}, v{r}, v{r+1}
        v_cvt_pk_bf16_f32 v{r}, v{r+2}, v{r}
        v_lshlrev_b32 v{r+2}, 16, v{r}
        v_and_b32 v{r}, 0xffff0000, v{r}
        v_add_f32 v{r+2}, v{r+2}, v{XD+k}
        v_cvt_pk_bf16_f32 v{r+2}, v{r+2}, v{r+2}
        v_and_b32 v{r+2}, 0xffff0000, v{r+2}
        v_add_f32 v{r}, v{r}, v{r+2}
        v_cvt_pk_bf16_f32 v{r}, v{r}, v{r}
        v_cmp_eq_f32 vcc, 0x40e00000, v{r+3}
        s_andn2_b64 s[{46+2*k}:{47+2*k}], vcc, s[68:69]
        """)
    a(f"""
    s_cmp_eq_u32 s66, 0
    s_mov_b32 s66, 0
    s_cbranch_scc1 L_Dstore
    s_barrier
    s_branch L_Dwait
    L_Dstore:
    s_and_b64 s[50:51], s[50:51], s[52:53]
    """)
    for k in range(3):
        so = ["0", "s40", "s41"][k]
        a(f"""
        s_mov_b64 exec, s[{46+2*k}:{47+2*k}]
        s_cbranch_execz L_Dns{k}
        buffer_store_short v{R+4*k}, v{AO}, s[36:39], {so} offen
        L_Dns{k}:
        """)
    a("s_mov_b64 exec, -1")
    write_stamps()
    a("L_end:")
    a("s_endpgm")

    head = open("sequential_preLN__sliding_block_cached__glu_gated_glu__decode.s.ref").read().split("; Override launch")[0]
    out = head + f"; @launch grid=(256,1,1) block=(256,1,1) lds={LDS_BYTES}\n"
    out += '.amdgcn_target "amdgcn-amd-amdhsa--gfx950"\n.text\n'
    out += f".globl {KN}\n.p2align 8\n.type {KN},@function\n{KN}:\n"
    out += "\n".join(a.L) + "\n"
    out += f""".section .rodata,"a"
.p2align 6
.amdhsa_kernel {KN}
  .amdhsa_next_free_vgpr 512
  .amdhsa_next_free_sgpr 102
  .amdhsa_accum_offset 256
  .amdhsa_group_segment_fixed_size 0
  .amdhsa_kernarg_size 96
  .amdhsa_user_sgpr_count 2
  .amdhsa_user_sgpr_kernarg_segment_ptr 1
  .amdhsa_system_sgpr_workgroup_id_x 1
  .amdhsa_float_denorm_mode_32 3
.end_amdhsa_kernel
"""
    return out

if __name__ == "__main__":
    kw = {}
    for x in sys.argv[2:]:
        k, v = x.split("=")
        kw[k] = eval(v)
    open(sys.argv[1], "w").write(gen(**kw))
```

```python
import sys, copy
KN = "sequential_preLN__sliding_block_cached__glu_gated_glu__decode_kernel"

ACC1 = 0
ACC1_B = 3584
ACC3 = 28672
FLAGS = 59392
TICK = FLAGS + 4096
SU = 69632
WS_USED = 31 * 4096
STAMP = 1 << 20

L_Q = 0
L_ML = 4096
L_PV = 5120
L_OP = 9216
L_HN = 30720
HN_STR = 1312
L_GP = 41472
LDS_BYTES = 57856

class Asm:
    def __init__(self):
        self.L = []
        self.vm = []
    def __call__(self, s):
        for x in s.split("\n"):
            x = x.strip()
            if x:
                self.L.append(x if x.endswith(":") else "  " + x)
    def vmem(self, s, tag=None):
        self(s)
        self.vm.append(tag)
        assert len(self.vm) <= 63, "too many outstanding vmem"
    def need(self, tag):
        if tag in self.vm:
            i = len(self.vm) - 1 - self.vm[::-1].index(tag)
            n = len(self.vm) - 1 - i
            self(f"s_waitcnt vmcnt({n})")
            self.vm = self.vm[i + 1:]
    def window(self, n):
        if len(self.vm) > n:
            self(f"s_waitcnt vmcnt({n})")
            self.vm = self.vm[len(self.vm) - n:] if n else []

def vr(b, n=4): return f"v[{b}:{b+n-1}]"
def ar(b, n=4): return f"a[{b}:{b+n-1}]"
DPPF = "row_mask:0xf bank_mask:0xf"

def allreduce(a, op, v, t, rows=4):
    for c in ["quad_perm:[1,0,3,2]", "quad_perm:[2,3,0,1]", "row_half_mirror", "row_mirror"]:
        a("s_nop 1")
        a(f"{op}_dpp v{v}, v{v}, v{v} {c} {DPPF}")
    a(f"v_mov_b32 v{t}, v{v}")
    a("s_nop 1")
    a(f"v_permlane16_swap_b32 v{v}, v{t}")
    a("s_nop 0")
    a(f"{op} v{v}, v{v}, v{t}")
    if rows == 4:
        a(f"v_mov_b32 v{t}, v{v}")
        a("s_nop 1")
        a(f"v_permlane32_swap_b32 v{v}, v{t}")
        a("s_nop 0")
        a(f"{op} v{v}, v{v}, v{t}")

def rbf(a, d, s):
    a(f"v_cvt_pk_bf16_f32 v{d}, v{s}, v{s}")
    a(f"v_and_b32 v{d}, 0xffff0000, v{d}")

def mixseq(main, extra, upto=None, skip=0):
    upto = len(main) if upto is None else upto
    seq = list(main[:skip]); acc = 0.0; ri = 0
    for x in main[skip:upto]:
        acc += len(extra) / (upto - skip)
        while acc >= 1.0 - 1e-9 and ri < len(extra):
            seq.append(extra[ri]); ri += 1; acc -= 1.0
        seq.append(x)
    return seq + extra[ri:] + list(main[upto:])

def gen(rot=16, W=10, stamps=False, wq_upto=54, dry=True, tailW=8, bound=200000, slp=6, fpoll='v', kf='nt', vf='nt', wf='nt', ff='nt', badmap=False, delay=0):
    a = Asm()
    def spin():
        return f"s_add_u32 s100, s100, 1\ns_cmp_gt_u32 s100, {bound}\ns_cbranch_scc1 L_end\n" if bound else ''
    LANE, KOFF, VOFF, QOFF, OOFF = 1, 2, 3, 4, 5
    T0, T1 = 6, 7
    M = 8
    XN = 12
    T2 = 15
    BA = [16, 20]
    D = [24, 28]
    QB = 32
    P = 48
    TT = 52
    BIG = 64
    RING = 96; NRING = 20
    NQR = 12
    RAW = 176
    APV, AOP, AAT, AL16 = 84, 85, 89, 90
    WOFF = 91
    def stamp(i):
        if stamps:
            a(f"s_memrealtime s[{80+2*i}:{81+2*i}]")

    a(f"s_cmp_ge_u32 s2, 256\ns_cbranch_scc1 L_end")
    a("s_load_dwordx16 s[40:55], s[0:1], 0")
    a("s_load_dwordx8 s[56:63], s[0:1], 64")
    a("s_mov_b32 s100, 0")
    stamp(0)
    if delay:
        a("s_memrealtime s[80:81]")
    a(f"""
    v_lshrrev_b32 v{T0}, 6, v0
    v_and_b32 v{LANE}, 63, v0
    v_readfirstlane_b32 s3, v{T0}
    v_lshrrev_b32 v{T1}, 4, v{LANE}
    v_and_b32 v{T2}, 15, v0
    v_lshlrev_b32 v{VOFF}, 4, v0
    v_and_b32 v{TT}, 3, v0
    v_lshl_add_u32 v{TT}, v{T1}, 2, v{TT}
    v_lshlrev_b32 v{TT}, 4, v{TT}
    v_lshl_add_u32 v{TT}, v{T0}, 10, v{TT}
    v_bfe_u32 v{TT+1}, v0, 2, 2
    v_lshl_add_u32 v{KOFF}, v{TT+1}, 8, v{TT}
    v_mul_u32_u24 v{TT}, 160, v{T0}
    v_add_u32 v{TT}, v{TT}, v{T1}
    v_lshlrev_b32 v{TT+1}, 4, v{T2}
    v_lshl_add_u32 v{QOFF}, v{TT}, 13, v{TT+1}
    v_lshl_add_u32 v{TT+2}, v{T2}, 2, v{TT}
    v_lshlrev_b32 v{TT+2}, 1, v{TT+2}
    v_lshlrev_b32 v{AL16}, 4, v{LANE}
    v_lshlrev_b32 v{TT+3}, 2, v{LANE}
    {'s_lshr_b32 s4, s2, 3' if badmap else 's_and_b32 s4, s2, 31'}
    {'s_and_b32 s5, s2, 7' if badmap else 's_lshr_b32 s5, s2, 5'}
    s_lshl_b32 s6, s5, 5
    s_add_u32 s6, s6, s4
    s_lshl_b32 s6, s6, 20
    s_add_u32 s6, s6, 0xC0000
    s_mul_i32 s64, s2, {rot*1024}
    s_and_b32 s64, s64, 0x3ffff
    s_mul_i32 s66, s5, 1280
    s_lshl_b32 s7, s4, 8
    s_mov_b32 s10, 0x40000
    s_mov_b32 s11, 0x20000
    s_mov_b32 s14, 0x40000
    s_mov_b32 s15, 0x20000
    s_mov_b32 s26, 10240
    s_mov_b32 s27, 0x20000
    s_sub_u32 s18, {640*8192}, s7
    s_mov_b32 s19, 0x20000
    s_waitcnt lgkmcnt(0)
    s_mov_b32 s24, s40
    s_mov_b32 s25, s41
    s_add_u32 s8, s42, s6
    s_addc_u32 s9, s43, 0
    s_add_u32 s16, s46, s7
    s_addc_u32 s17, s47, 0
    """)
    a.vmem(f"buffer_load_dwordx4 {vr(BIG)}, v{AL16}, s[24:27], s66 offen", "x")
    a.vmem(f"buffer_load_dword v{BIG+4}, v{TT+3}, s[24:27], s66 offen offset:1024", "x")
    for u in range(3):
        a.vmem(f"buffer_load_ushort v{XN+u}, v{TT+2}, s[24:27], s66 offen offset:{u*128}", "x")

    def ldK(i):
        a(f"s_add_u32 s65, s64, {i*4096}\ns_and_b32 s65, s65, 0x3ffff")
        a.vmem(f"buffer_load_dwordx4 {ar(4*i)}, v{KOFF}, s[8:11], s65 offen {kf}", ("k", i))
    st = {"k": 0, "v": 0, "q": 0}
    def ldV(i):
        assert i - st["v"] < NRING and st["q"] == 40
        a(f"s_add_u32 s65, s64, {i*4096}\ns_and_b32 s65, s65, 0x3ffff")
        a.vmem(f"buffer_load_dwordx4 {vr(RING+4*(i%NRING))}, v{VOFF}, s[12:15], s65 offen {vf}", ("v", i))
    def ldQ(t):
        a(f"s_mov_b32 s65, {t*32768}")
        a.vmem(f"buffer_load_dwordx4 {vr(RING+4*(t%NQR))}, v{QOFF}, s[16:19], s65 offen {wf}", ("q", t))
    def ldO(j):
        assert j < st["k"]
        t, G = j // 5, j % 5
        a(f"s_mov_b32 s65, {t*5120}")
        a.vmem(f"buffer_load_dwordx4 {ar(4*j)}, v{OOFF}, s[20:23], s65 offen offset:{G*256} {wf}", ("o", j))
    LD = {"k": ldK, "v": ldV, "q": ldQ, "o": ldO}

    Ks = [("k", i) for i in range(64)]; Qs = [("q", t) for t in range(40)]
    Vs = [("v", i) for i in range(64)]; Os = [("o", j) for j in range(40)]
    seqK = mixseq(Ks, Qs, upto=wq_upto)
    NFIRST = 8
    for x in seqK[:NFIRST]:
        LD[x[0]](x[1])
    a(f"""
    s_add_u32 s12, s44, s6
    s_addc_u32 s13, s45, 0
    s_mul_i32 s7, s4, 163840
    s_add_u32 s20, s48, s7
    s_addc_u32 s21, s49, 0
    s_mov_b32 s22, 163840
    s_mov_b32 s23, 0x20000
    s_mov_b32 s28, s62
    s_mov_b32 s29, s63
    s_mov_b32 s30, {WS_USED}
    s_mov_b32 s31, 0x20000
    s_mov_b32 s36, s58
    s_mov_b32 s37, s59
    s_mov_b32 s38, 10240
    s_mov_b32 s39, 0x20000
    v_lshl_add_u32 v{TT}, v{T0}, 5, v{T1}
    v_mul_u32_u24 v{TT}, 1280, v{TT}
    v_add_u32 v{OOFF}, v{TT}, v{TT+1}
    """)
    a(f"""
    s_cmp_lt_u32 s2, 17
    s_cselect_b32 s7, 0, -1
    s_lshl_b32 s65, s2, 12
    v_mov_b32 v{BIG+8}, s7
    v_mov_b32 v{BIG+9}, s7
    v_mov_b32 v{BIG+10}, s7
    v_mov_b32 v{BIG+11}, s7
    """)
    a.vmem(f"buffer_store_dwordx4 {vr(BIG+8)}, v{VOFF}, s[28:31], s65 offen sc1", "init")
    a(f"""
    v_and_b32 v{TT}, 1, v0
    v_lshlrev_b32 v{TT}, 4, v{TT}
    v_mov_b32 v{TT+1}, 0xffff
    v_lshlrev_b32 v{TT}, v{TT}, v{TT+1}
    v_lshrrev_b32 v{TT+1}, 1, v{T2}
    """)
    for r in range(4):
        a(f"v_cmp_eq_u32 vcc, {r}, v{TT+1}\ns_nop 1\nv_cndmask_b32 v{M+r}, 0, v{TT}, vcc")
    a.need("x")
    X = BIG + 12
    for i in range(5):
        a(f"v_lshlrev_b32 v{X+2*i}, 16, v{BIG+i}\nv_and_b32 v{X+2*i+1}, 0xffff0000, v{BIG+i}")
    a(f"v_add_f32 v{TT}, v{X}, v{X+1}")
    for i in range(2, 10):
        a(f"v_add_f32 v{TT}, v{TT}, v{X+i}")
    allreduce(a, "v_add_f32", TT, TT + 1)
    a(f"v_mul_f32 v{TT}, 0x3acccccd, v{TT}")
    a(f"v_mov_b32 v{TT+2}, 0")
    for i in range(10):
        a(f"v_sub_f32 v{X+i}, v{X+i}, v{TT}\nv_fmac_f32 v{TT+2}, v{X+i}, v{X+i}")
    allreduce(a, "v_add_f32", TT + 2, TT + 1)
    a(f"v_mul_f32 v{TT+2}, 0x3acccccd, v{TT+2}")
    rbf(a, TT, TT)
    rbf(a, TT + 2, TT + 2)
    a(f"v_add_f32 v{TT+2}, 0x3727c5ac, v{TT+2}")
    rbf(a, TT + 2, TT + 2)
    a(f"v_sqrt_f32 v{TT+2}, v{TT+2}\ns_nop 0")
    rbf(a, TT + 2, TT + 2)
    a(f"v_rcp_f32 v{TT+2}, v{TT+2}")
    for u in range(3):
        a(f"v_lshlrev_b32 v{XN+u}, 16, v{XN+u}\nv_sub_f32 v{XN+u}, v{XN+u}, v{TT}")
        rbf(a, XN + u, XN + u)
        a(f"v_mul_f32 v{XN+u}, v{XN+u}, v{TT+2}\nv_cvt_pk_bf16_f32 v{XN+u}, v{XN+u}, v{XN+u}")
    a("s_nop 1")

    def selB(dst, src, lane):
        for r in range(4):
            a(f"v_and_b32_dpp v{dst+r}, v{src}, v{M+r} row_newbcast:{lane} {DPPF}")
    def useQ(t):
        B = BA[t & 1]
        selB(B, XN + (t >> 4), t & 15)
        a.need(("q", t))
        a("s_nop 1")
        c = "0" if t == 0 else vr(D[0])
        a(f"v_mfma_f32_16x16x32_bf16 {vr(D[0])}, {vr(RING+4*(t%NQR))}, {vr(B)}, {c}")
        st["q"] = t + 1

    full = seqK + mixseq(Vs, Os, skip=10, upto=60)
    pos = NFIRST
    qdone = 0
    def issue(n=1):
        nonlocal pos
        for _ in range(n):
            if pos < len(full):
                x = full[pos]; pos += 1
                LD[x[0]](x[1])
    idx = {x: i for i, x in enumerate(full)}
    while qdone < 40:
        while qdone < 40 and idx[("q", qdone)] <= pos - W:
            useQ(qdone); qdone += 1
        if qdone < 40:
            x = full[pos]
            if x[0] == "q":
                assert x[1] - qdone < NQR
            assert x[0] != "v"
            a.window(W + 2)
            issue()
    a(f"""
    v_lshrrev_b32 v{TT}, 4, v{LANE}
    v_and_b32 v{TT+1}, 15, v0
    v_lshl_add_u32 v{TT+2}, v{TT}, 5, v{TT+1}
    v_lshlrev_b32 v{TT+2}, 2, v{TT+2}
    v_and_b32 v{TT+3}, 8, v0
    v_lshl_add_u32 v{TT+2}, v{TT+3}, 8, v{TT+2}
    s_lshl_b32 s7, s3, 9
    v_add_u32 v{TT+2}, s7, v{TT+2}
    v_and_b32 v{TT+3}, 3, v0
    v_lshl_add_u32 v{TT+3}, v{TT}, 2, v{TT+3}
    v_lshlrev_b32 v{TT+3}, 5, v{TT+3}
    """)
    for r in range(4):
        a(f"ds_write_b32 v{TT+2}, v{D[0]+r} offset:{L_Q + r*32}")
    issue()
    a("s_waitcnt lgkmcnt(0)\ns_barrier")
    QP = RAW
    for w in range(4):
        for hf in range(2):
            a(f"ds_read_b128 {vr(QP+8*w+4*hf)}, v{TT+3} offset:{L_Q + w*512 + hf*16}")
    assert "init" not in a.vm
    a(f"""
    s_cmp_lt_u32 s2, 31
    s_cselect_b32 s7, s3, 1
    s_cmp_eq_u32 s7, 0
    s_cbranch_scc0 L_nosig
    s_mov_b32 s7, 1
    s_atomic_add s7, s[60:61], 0x0
    L_nosig:
    s_waitcnt lgkmcnt(0)
    """)
    for j in range(8):
        a(f"v_add_f32 v{QP+j}, v{QP+j}, v{QP+8+j}\nv_add_f32 v{QP+16+j}, v{QP+16+j}, v{QP+24+j}\nv_add_f32 v{QP+j}, v{QP+j}, v{QP+16+j}")
    for j in range(4):
        a(f"v_cvt_pk_bf16_f32 v{QP+j}, v{QP+2*j}, v{QP+2*j+1}")
    for t in range(4):
        m = 0x000F000F << (4 * t)
        a(f"s_mov_b32 s68, {m:#x}\ns_mov_b32 s69, {m:#x}")
        for j in range(4):
            a(f"v_cndmask_b32 v{QB+4*t+j}, 0, v{QP+j}, s[68:69]")
    for s in range(1, 4):
        m = 0x11111111 << s
        a(f"s_mov_b32 s{68+2*s}, {m:#x}\ns_mov_b32 s{69+2*s}, {m:#x}")
    issue()
    stamp(1)
    def post(u):
        Dd = D[u & 1]; dst = P + (u >> 2) if (u & 3) == 0 else TT
        a(f"v_mov_b32_dpp v{TT}, v{Dd} quad_perm:[0,0,0,0] {DPPF}")
        a(f"v_add_f32_dpp v{TT}, v{Dd+1}, v{TT} quad_perm:[1,1,1,1] {DPPF}")
        a(f"v_add_f32_dpp v{TT}, v{Dd+2}, v{TT} quad_perm:[2,2,2,2] {DPPF}")
        a(f"v_add_f32_dpp v{dst}, v{Dd+3}, v{TT} quad_perm:[3,3,3,3] {DPPF}")
        if u & 3:
            s = u & 3
            a(f"v_cndmask_b32 v{P+(u>>2)}, v{P+(u>>2)}, v{TT}, s[{68+2*s}:{69+2*s}]")
        else:
            a("s_nop 0")
    for u in range(16):
        while idx[("k", 4 * u + 3)] > pos - min(W, 7):
            issue()
        a.need(("k", 4 * u + 3))
        for t in range(4):
            c = "0" if t == 0 else vr(D[u & 1])
            a(f"v_mfma_f32_16x16x32_bf16 {vr(D[u&1])}, {ar(16*u+4*t)}, {vr(QB+4*t)}, {c}")
        st["k"] = 4 * u + 4
        if u == 0:
            a("s_nop 4")
        else:
            post(u - 1)
        if u % 3 == 2:
            assert full[pos][0] != "o" or full[pos][1] < 4 * u
            issue()
    a("s_nop 3")
    post(15)
    S = TT + 2
    for i in range(2):
        a(f"v_cvt_pk_bf16_f32 v{TT}, v{P+2*i}, v{P+2*i+1}")
        a(f"v_lshlrev_b32 v{S+2*i}, 16, v{TT}\nv_and_b32 v{S+2*i+1}, 0xffff0000, v{TT}")
        a(f"v_mul_f32 v{S+2*i}, 0x3db504f3, v{S+2*i}\nv_mul_f32 v{S+2*i+1}, 0x3db504f3, v{S+2*i+1}")
        a(f"v_cvt_pk_bf16_f32 v{TT}, v{S+2*i}, v{S+2*i+1}")
        a(f"v_lshlrev_b32 v{S+2*i}, 16, v{TT}\nv_and_b32 v{S+2*i+1}, 0xffff0000, v{TT}")
    MX, LS = TT + 6, TT + 7
    a(f"v_max_f32 v{MX}, v{S}, v{S+1}\nv_max3_f32 v{MX}, v{MX}, v{S+2}, v{S+3}")
    allreduce(a, "v_max_f32", MX, TT)
    issue()
    for i in range(4):
        a(f"v_sub_f32 v{P+i}, v{S+i}, v{MX}\nv_mul_f32 v{P+i}, 0x3fb8aa3b, v{P+i}\nv_exp_f32 v{P+i}, v{P+i}")
    a(f"s_nop 0\nv_add_f32 v{LS}, v{P}, v{P+1}\nv_add_f32 v{TT}, v{P+2}, v{P+3}\nv_add_f32 v{LS}, v{LS}, v{TT}")
    allreduce(a, "v_add_f32", LS, TT)
    a(f"s_lshl_b32 s7, s3, 3\nv_mov_b32 v{TT}, s7\nds_write_b64 v{TT}, v[{MX}:{LS}] offset:{L_ML}")
    issue()
    a(f"s_waitcnt lgkmcnt(0)\ns_barrier\nv_mov_b32 v{TT}, 0")
    ML = BIG
    a(f"ds_read_b128 {vr(ML)}, v{TT} offset:{L_ML}\nds_read_b128 {vr(ML+4)}, v{TT} offset:{L_ML+16}")
    issue()
    a("s_waitcnt lgkmcnt(0)")
    a(f"v_max_f32 v{MX}, v{ML}, v{ML+2}\nv_max3_f32 v{MX}, v{MX}, v{ML+4}, v{ML+6}")
    for w in range(4):
        a(f"v_sub_f32 v{ML+2*w}, v{ML+2*w}, v{MX}\nv_mul_f32 v{ML+2*w}, 0x3fb8aa3b, v{ML+2*w}\nv_exp_f32 v{ML+2*w}, v{ML+2*w}")
    for i in range(4):
        a(f"v_sub_f32 v{P+i}, v{S+i}, v{MX}\nv_mul_f32 v{P+i}, 0x3fb8aa3b, v{P+i}\nv_exp_f32 v{P+i}, v{P+i}")
    a(f"v_mul_f32 v{LS}, v{ML}, v{ML+1}")
    for w in range(1, 4):
        a(f"v_fmac_f32 v{LS}, v{ML+2*w}, v{ML+2*w+1}")
    a(f"v_rcp_f32 v{LS}, v{LS}\ns_nop 0")
    PP = XN - 0
    for i in range(4):
        a(f"v_mul_f32 v{P+i}, v{P+i}, v{LS}")
    for i in range(4):
        a(f"v_cvt_pk_bf16_f32 v{P+i}, v{P+i}, v{P+i}")
    stamp(2)
    a(f"""
    v_lshrrev_b32 v{T1}, 4, v{LANE}
    v_and_b32 v{TT}, 1, v0
    v_lshl_add_u32 v{TT}, v{TT}, 2, v{T1}
    s_lshl_b32 s7, s3, 4
    v_add_u32 v{TT}, s7, v{TT}
    v_bfe_u32 v{TT+1}, v0, 1, 2
    v_lshlrev_b32 v{TT+1}, 2, v{TT+1}
    v_lshl_add_u32 v{APV}, v{TT}, 4, v{TT+1}
    v_bfe_u32 v{TT}, v0, 2, 5
    v_mul_u32_u24 v{TT}, 20, v{TT}
    v_lshrrev_b32 v{TT+1}, 7, v0
    v_mul_u32_u24 v{TT+1}, 3, v{TT+1}
    v_and_b32 v{TT+2}, 3, v0
    v_add3_u32 v{TT}, v{TT}, v{TT+1}, v{TT+2}
    v_lshlrev_b32 v{AAT}, 2, v0
    """)
    for k in range(4):
        a(f"""
        v_add_u32 v{TT+1}, {6*k}, v{TT}
        v_lshrrev_b32 v{TT+2}, 5, v{TT+1}
        v_lshlrev_b32 v{TT+2}, 8, v{TT+2}
        v_and_b32 v{TT+3}, 7, v{TT+1}
        v_lshl_add_u32 v{TT+2}, v{TT+3}, 4, v{TT+2}
        v_bfe_u32 v{TT+3}, v{TT+1}, 3, 2
        v_lshl_add_u32 v{AOP+k}, v{TT+3}, 2, v{TT+2}
        """)
    a(f"""
    s_and_b32 s70, s2, 7
    s_lshr_b32 s71, s2, 3
    s_min_u32 s72, s70, 3
    s_mul_i32 s73, s70, 3
    s_add_u32 s73, s73, s72
    s_cmp_lt_u32 s70, 3
    s_cselect_b32 s72, 4, 3
    s_lshl_b32 s7, s70, 8
    s_add_u32 s7, s7, {TICK}
    s_add_u32 s74, s62, s7
    s_addc_u32 s75, s63, 0
    s_mul_i32 s67, s5, {ACC1_B}
    s_mov_b32 s68, 0x88888888
    s_mov_b32 s69, 0x88888888
    """)

    def usePV(i):
        B = BA[i & 1]; u, t = i >> 2, i & 3
        selB(B, P + (u >> 2), 4 * t + (u & 3))
        a.need(("v", i))
        a("s_nop 1")
        c = "0" if i == 0 else vr(D[0])
        a(f"v_mfma_f32_16x16x32_bf16 {vr(D[0])}, {vr(RING+4*(i%NRING))}, {vr(B)}, {c}")
        st["v"] = i + 1
    vdone = 0
    checked = False
    while pos < len(full):
        n = 0
        while vdone < 64 - tailW and idx[("v", vdone)] <= pos - W and n < 3:
            usePV(vdone); vdone += 1; n += 1
        x = full[pos]
        if x[0] == "v":
            while x[1] - vdone >= NRING:
                usePV(vdone); vdone += 1
        a.window(W + 6)
        issue()
        if x == ("v", 36):
            a(f"v_mov_b32 v{TT+1}, 0")
            a.vmem(f"global_load_dword v{TT}, v{TT+1}, s[60:61] sc1", "ichk")
        if x == ("v", 48):
            a.need("ichk")
            a(f"""
            L_ichk:
            v_cmp_gt_u32 vcc, 31, v{TT}
            s_cbranch_vccz L_iok
            {spin()}
            global_load_dword v{TT}, v{TT+1}, s[60:61] sc1
            s_waitcnt vmcnt(0)
            s_branch L_ichk
            L_iok:
            """)
    while vdone < 64 - tailW:
        usePV(vdone); vdone += 1
    stamp(3)
    a(f"""
    s_lshl_b32 s7, s72, 1
    s_cmp_lt_u32 s71, s7
    s_cbranch_scc1 L_roleG
    s_sub_u32 s77, s71, 8
    s_cmp_lt_u32 s77, 10
    s_cbranch_scc1 L_roleD
    """)
    vm0 = list(a.vm)

    def att_tail(name, pre):
        a.vm = list(vm0)
        pre = list(pre)
        per = (len(pre) + tailW - 1) // tailW
        for i in range(64 - tailW, 64):
            usePV(i)
            if i < 63:
                for _ in range(per):
                    if pre: pre.pop(0)()
        for j in range(40):
            assert ("o", j) not in a.vm
        a(f"s_lshl_b32 s7, s3, 10\nv_add_u32 v{TT}, s7, v{AL16}\ns_mul_i32 s7, s3, 5120\nv_add_u32 v{T2}, s7, v{AL16}")
        a("s_nop 3")
        a(f"ds_write_b128 v{TT}, {vr(D[0])} offset:{L_PV}")
        a("s_waitcnt lgkmcnt(0)\ns_barrier")
        assert L_PV % 256 == 0
        o = L_PV // 256
        a(f"ds_read2st64_b32 v[{BA[0]}:{BA[0]+1}], v{APV} offset0:{o} offset1:{o+4}")
        a(f"ds_read2st64_b32 v[{BA[0]+2}:{BA[0]+3}], v{APV} offset0:{o+8} offset1:{o+12}")
        for f in pre: f()
        a("s_waitcnt lgkmcnt(0)")
        stamp(4)
        a(f"""
        v_add_f32 v{BA[0]}, v{BA[0]}, v{BA[0]+1}
        v_add_f32 v{BA[0]+2}, v{BA[0]+2}, v{BA[0]+3}
        s_mov_b32 s76, 1
        v_add_f32 v{BA[0]}, v{BA[0]}, v{BA[0]+2}
        s_cmp_eq_u32 s3, 0
        v_cvt_pk_bf16_f32 v{T0}, v{BA[0]}, v{BA[0]}
        s_cbranch_scc0 L_notick{name}
        s_atomic_add s76, s[74:75], 0x0 glc
        L_notick{name}:
        s_nop 0
        """)
        OB = QB; OD = BIG
        selB(OB, T0, 0)
        order = [(t, G) for t in range(6) for G in range(5)] + [(t, G) for G in range(5) for t in (6, 7)]
        pend = [(t, r) for t in range(1, 8) for r in range(4)]
        a("s_nop 1")
        lastm = {}
        wr = 0
        for n, (t, G) in enumerate(order):
            c = "0" if t == 0 else vr(OD + 4 * G)
            a(f"v_mfma_f32_16x16x32_bf16 {vr(OD+4*G)}, {ar(4*(5*t+G))}, {vr(OB+4*t)}, {c}")
            if pend and not (n % 5 >= 3 and pend[0][0] == t + 1):
                k = 2 if (n % 5 == 0 and n < 5) or pend[0][0] == t + 1 else 1
                for _ in range(k):
                    if pend:
                        tt, r = pend.pop(0)
                        a(f"v_and_b32_dpp v{OB+4*tt+r}, v{T0}, v{M+r} row_newbcast:{tt} {DPPF}")
        assert not pend
        a(f"ds_write_b128 v{T2}, {vr(OD)} offset:{L_OP}")
        a("s_nop 0")
        a(f"ds_write_b128 v{T2}, {vr(OD+4)} offset:{L_OP+1024}")
        a("s_nop 0")
        a(f"ds_write_b128 v{T2}, {vr(OD+8)} offset:{L_OP+2048}")
        a("s_nop 0")
        a(f"ds_write_b128 v{T2}, {vr(OD+12)} offset:{L_OP+3072}")
        a("s_nop 0")
        a(f"ds_write_b128 v{T2}, {vr(OD+16)} offset:{L_OP+4096}")
        a(f"""
        s_waitcnt lgkmcnt(0)
        s_cmp_eq_u32 s76, 31
        s_cbranch_scc0 L_noflag{name}
        v_lshlrev_b32 v{T0}, 8, v{LANE}
        v_mov_b32 v{T1}, 1
        s_lshl_b32 s7, s70, 2
        s_add_u32 s7, s7, {FLAGS}
        s_mov_b64 exec, 0xffff
        buffer_store_dword v{T1}, v{T0}, s[28:31], s7 offen sc1
        s_mov_b64 exec, -1
        L_noflag{name}:
        s_barrier
        """)
        a.vm.append("maybe")
        o = L_OP // 256
        R = QB
        for k in range(4):
            a(f"ds_read2st64_b32 v[{R+4*k}:{R+4*k+1}], v{AOP+k} offset0:{o} offset1:{o+20}")
            a(f"ds_read2st64_b32 v[{R+4*k+2}:{R+4*k+3}], v{AOP+k} offset0:{o+40} offset1:{o+60}")
        for k in range(4):
            if k == 3:
                a(f"s_cmp_ge_u32 s3, 2\ns_cbranch_scc1 L_no3{name}")
            a(f"s_waitcnt lgkmcnt({6-2*k})")
            a(f"v_add_f32 v{R+4*k}, v{R+4*k}, v{R+4*k+1}\nv_add_f32 v{R+4*k+2}, v{R+4*k+2}, v{R+4*k+3}\nv_add_f32 v{R+4*k}, v{R+4*k}, v{R+4*k+2}")
            a(f"v_cndmask_b32 v{R+4*k}, v{R+4*k}, 1.0, s[68:69]")
            a(f"buffer_atomic_add_f32 v{R+4*k}, v{AAT}, s[28:31], s67 offen offset:{ACC1 + k*1024}")
        a(f"L_no3{name}:")
        a("s_waitcnt lgkmcnt(0)")
        stamp(5)

    def transpose(src, dst):
        for t in range(4):
            for p in range(4):
                sel = "s78" if t & 1 else "s79"
                a(f"v_perm_b32 v{dst+4*t+p}, v{src+2*(2*p+1)+(t>>1)}, v{src+2*(2*p)+(t>>1)}, {sel}")

    dl = [0]
    def write_stamps():
        if delay:
            dl[0] += 1
            a(f"L_dl{dl[0]}:\ns_memrealtime s[82:83]\ns_waitcnt lgkmcnt(0)\ns_sub_u32 s82, s82, s80\ns_cmp_lt_u32 s82, {delay}\ns_cbranch_scc1 L_dl{dl[0]}")
        if stamps:
            a("s_waitcnt vmcnt(0)")
            stamp(9)
            a("s_waitcnt lgkmcnt(0)")
            for i in range(10):
                a(f"v_mov_b32 v{BIG+i}, s{80+2*i}")
            a(f"s_getreg_b32 s7, hwreg(HW_REG_XCC_ID)\nv_mov_b32 v{BIG+10}, s7\nv_mov_b32 v{BIG+11}, s79")
            a(f"s_lshl_b32 s7, s2, 2\ns_add_u32 s7, s7, s3\ns_lshl_b32 s7, s7, 6\ns_add_u32 s7, s7, {STAMP}\nv_mov_b32 v{T0}, s7")
            for i in range(3):
                a(f"global_store_dwordx4 v{T0}, {vr(BIG+4*i)}, s[62:63] offset:{16*i}")

    att_tail("N", [])
    if stamps:
        a("s_mov_b32 s92, 0\ns_mov_b32 s94, 0\ns_mov_b32 s96, 0\ns_mov_b32 s79, 0")
    write_stamps()
    a("s_endpgm")

    a("L_roleG:")
    a(f"""
    s_lshr_b32 s7, s71, 1
    s_add_u32 s73, s73, s7
    s_and_b32 s77, s71, 1
    s_cmp_eq_u32 s77, 0
    s_cselect_b32 s32, s52, s54
    s_cselect_b32 s33, s53, s55
    s_mov_b32 s34, {640*3456}
    s_mov_b32 s35, 0x20000
    v_lshrrev_b32 v{T1}, 4, v{LANE}
    v_mul_u32_u24 v{T1}, {8*3456}, v{T1}
    v_and_b32 v{T0}, 15, v0
    v_lshl_add_u32 v{T1}, v{T0}, 3, v{T1}
    s_mul_i32 s7, s3, {160*3456}
    s_lshl_b32 s65, s73, 7
    s_add_u32 s7, s7, s65
    v_add_u32 v{WOFF}, s7, v{T1}
    """)
    def ldG(n):
        s, jj = n // 8, n % 8
        def f():
            a(f"s_mov_b32 s65, {(32*s+jj)*3456}")
            a.vmem(f"buffer_load_dwordx2 {vr(RAW+2*n, 2)}, v{WOFF}, s[32:35], s65 offen {ff}", ("g", n))
        return f
    att_tail("G", [ldG(n) for n in range(16)])
    for n in range(16, 40):
        ldG(n)()
    XR = QB
    AX, AA, AH, AF, AG = 2, 3, 4, 5, 12
    a(f"""
    v_lshrrev_b32 v{T0}, 5, v0
    v_and_b32 v{T1}, 31, v0
    v_mul_u32_u24 v{T2}, 40, v{T1}
    v_mul_u32_u24 v{AX}, 1280, v{T0}
    v_add_u32 v{AX}, v{AX}, v{T2}
    v_mul_u32_u24 v{AH}, {HN_STR}, v{T0}
    v_add_u32 v{AH}, v{AH}, v{T2}
    v_mul_u32_u24 v{AA}, {ACC1_B}, v{T0}
    v_lshl_add_u32 v{AA}, v{T1}, 4, v{AA}
    """)
    for i in range(5):
        a.vmem(f"buffer_load_dwordx2 {vr(XR+2*i, 2)}, v{AX}, s[24:27], 0 offen offset:{8*i}", "xr")
    a(f"""
    v_and_b32 v{T0}, 7, v0
    v_mul_u32_u24 v{AF}, {HN_STR}, v{T0}
    v_lshrrev_b32 v{T1}, 4, v{LANE}
    v_lshl_add_u32 v{AF}, v{T1}, 4, v{AF}
    s_mul_i32 s7, s3, 320
    v_add_u32 v{AF}, s7, v{AF}
    v_bfe_u32 v{T0}, v0, 5, 1
    v_lshlrev_b32 v{T0}, 3, v{T0}
    s_lshl_b32 s7, s3, 1
    v_bfe_u32 v{T1}, v0, 1, 1
    v_add3_u32 v{T0}, v{T0}, s7, v{T1}
    v_bfe_u32 v{T1}, v0, 4, 1
    v_lshl_add_u32 v{T0}, v{T1}, 4, v{T0}
    v_lshlrev_b32 v{T0}, 4, v{T0}
    v_and_b32 v{T1}, 12, v0
    v_add_u32 v{T0}, v{T0}, v{T1}
    v_and_b32 v{T1}, 1, v0
    v_lshl_add_u32 v{AG}, v{T1}, 11, v{T0}
    s_lshl_b32 s7, s3, 12
    v_add_u32 v13, s7, v{AL16}
    s_mov_b32 s78, 0x07060302
    s_mov_b32 s79, 0x05040100
    v_and_b32 v14, 7, v0
    v_lshlrev_b32 v14, 2, v14
    s_mul_i32 s76, s77, 27
    s_add_u32 s76, s76, s73
    s_and_b32 s7, {'s76' if fpoll == 's' else 's2'}, 15
    s_lshl_b32 s7, s7, 8
    s_add_u32 s7, s7, {FLAGS}
    s_add_u32 s74, s62, s7
    s_addc_u32 s75, s63, 0
    s_lshl_b32 s76, s76, 10
    s_add_u32 s76, s76, {SU}
    """)
    WT = RING
    younger = 24 + 5
    a(f"s_waitcnt vmcnt({younger})")
    transpose(RAW, WT); transpose(RAW + 16, WT + 16)
    for s in range(2, 5):
        a(f"s_waitcnt vmcnt({(4-s)*8+5})")
        transpose(RAW + 16 * s, WT + 16 * s)
    a("s_waitcnt vmcnt(0)")
    a.vm = []
    XF = RAW + 32
    for i in range(10):
        a(f"v_lshlrev_b32 v{XF+2*i}, 16, v{XR+i}\nv_and_b32 v{XF+2*i+1}, 0xffff0000, v{XR+i}")
    AC = RAW
    a("s_mov_b32 s79, 0")
    a(f"s_mov_b32 s66, {1 if dry else 0}")
    if dry:
        a("s_branch L_Gbody")
    if fpoll == 's':
        POLL = """s_load_dwordx8 s[40:47], s[74:75], 0x0 glc
        s_waitcnt lgkmcnt(0)
        s_and_b32 s40, s40, s41
        s_and_b32 s42, s42, s43
        s_and_b32 s44, s44, s45
        s_and_b32 s46, s46, s47
        s_and_b32 s40, s40, s42
        s_and_b32 s44, s44, s46
        s_and_b32 s40, s40, s44
        s_cbranch_scc0 L_Gpoll"""
    else:
        POLL = f"""global_load_dword v{T1}, v14, s[74:75] sc1
        s_waitcnt vmcnt(0)
        v_cmp_eq_u32 vcc, 0, v{T1}
        s_cbranch_vccnz L_Gpoll"""
    a("L_Gwait:")
    a(f"""
    s_cmp_eq_u32 s3, 0
    s_cbranch_scc0 L_Gbar
    L_Gpoll:
    {spin()}
    {POLL}
    L_Gbar:
    s_barrier
    """)
    stamp(6)
    a("L_Gread:")
    a(spin())
    for i in range(7):
        a(f"buffer_load_dwordx4 {vr(AC+4*i)}, v{AA}, s[28:31], 0 offen offset:{ACC1 + 512*i} sc1")
    if stamps:
        a("s_add_u32 s79, s79, 1")
    a(f"""
    s_waitcnt vmcnt(0)
    v_min3_f32 v{T0}, v{AC+3}, v{AC+7}, v{AC+11}
    v_min3_f32 v{T1}, v{AC+15}, v{AC+19}, v{AC+23}
    v_min3_f32 v{T0}, v{T0}, v{T1}, v{AC+27}
    v_cmp_neq_f32 vcc, 0x42000000, v{T0}
    s_cbranch_vccnz L_Gread
    """)
    stamp(7)
    a("L_Gbody:")
    H = RAW + 52
    val = [AC + 4 * (e // 3) + e % 3 for e in range(20)]
    for i in range(10):
        a(f"v_cvt_pk_bf16_f32 v{T0}, v{val[2*i]}, v{val[2*i+1]}")
        a(f"v_lshlrev_b32 v{H+2*i}, 16, v{T0}\nv_and_b32 v{H+2*i+1}, 0xffff0000, v{T0}")
        a(f"v_pk_add_f32 {vr(H+2*i,2)}, {vr(H+2*i,2)}, {vr(XF+2*i,2)}")
        a(f"v_cvt_pk_bf16_f32 v{T0}, v{H+2*i}, v{H+2*i+1}")
        a(f"v_lshlrev_b32 v{H+2*i}, 16, v{T0}\nv_and_b32 v{H+2*i+1}, 0xffff0000, v{T0}")
        if i == 1:
            a(f"v_pk_add_f32 {vr(TT,2)}, {vr(H,2)}, {vr(H+2,2)}")
        elif i > 1:
            a(f"v_pk_add_f32 {vr(TT,2)}, {vr(TT,2)}, {vr(H+2*i,2)}")
    a(f"v_add_f32 v{TT}, v{TT}, v{TT+1}")
    allreduce(a, "v_add_f32", TT, TT + 1, rows=2)
    a(f"v_mul_f32 v{TT}, 0xbacccccd, v{TT}")
    rbf(a, TT + 2, TT)
    for i in range(10):
        a(f"v_pk_add_f32 {vr(TT+4,2)}, {vr(H+2*i,2)}, {vr(TT,2)} op_sel_hi:[1,0]")
        if i == 0:
            a(f"v_pk_mul_f32 {vr(TT+6,2)}, {vr(TT+4,2)}, {vr(TT+4,2)}")
        else:
            a(f"v_pk_fma_f32 {vr(TT+6,2)}, {vr(TT+4,2)}, {vr(TT+4,2)}, {vr(TT+6,2)}")
    a(f"v_add_f32 v{TT+6}, v{TT+6}, v{TT+7}")
    steps = ["quad_perm:[1,0,3,2]", "quad_perm:[2,3,0,1]", "row_half_mirror", "row_mirror"]
    for i in range(10):
        a(f"v_pk_add_f32 {vr(H+2*i,2)}, {vr(H+2*i,2)}, {vr(TT+2,2)} op_sel_hi:[1,0]")
        a(f"v_cvt_pk_bf16_f32 v{T0}, v{H+2*i}, v{H+2*i+1}")
        a(f"v_lshlrev_b32 v{H+2*i}, 16, v{T0}\nv_and_b32 v{H+2*i+1}, 0xffff0000, v{T0}")
        V_ = TT + 6
        if i < 4:
            a(f"v_add_f32_dpp v{V_}, v{V_}, v{V_} {steps[i]} {DPPF}")
            if i == 3:
                a(f"v_mov_b32 v{V_+1}, v{V_}")
        elif i == 4:
            a(f"v_permlane16_swap_b32 v{V_}, v{V_+1}")
        elif i == 5:
            a(f"v_add_f32 v{V_}, v{V_}, v{V_+1}\nv_mul_f32 v{V_}, 0x3acccccd, v{V_}")
            rbf(a, V_, V_)
            a(f"v_add_f32 v{V_}, 0x3727c5ac, v{V_}")
            rbf(a, V_, V_)
            a(f"v_sqrt_f32 v{V_}, v{V_}")
        elif i == 6:
            rbf(a, V_, V_)
            a(f"v_rcp_f32 v{V_}, v{V_}")
    HP = AC
    for i in range(10):
        a(f"v_pk_mul_f32 {vr(H+2*i,2)}, {vr(H+2*i,2)}, {vr(TT+6,2)} op_sel_hi:[1,0]")
        a(f"v_cvt_pk_bf16_f32 v{HP+i}, v{H+2*i}, v{H+2*i+1}")
        if i & 1:
            a(f"ds_write_b64 v{AH}, {vr(HP+i-1,2)} offset:{L_HN + 4*(i-1)}")
    a("s_waitcnt lgkmcnt(0)\ns_barrier")
    FA = BIG
    for s in range(5):
        a(f"ds_read_b128 {vr(FA+4*s)}, v{AF} offset:{L_HN + 64*s}")
    GD = QB
    for s in range(5):
        a(f"s_waitcnt lgkmcnt({4-s})")
        for t in range(4):
            c = "0" if s == 0 else vr(GD + 4 * t)
            a(f"v_mfma_f32_16x16x32_bf16 {vr(GD+4*t)}, {vr(FA+4*s)}, {vr(WT+16*s+4*t)}, {c}")
    a("s_nop 4")
    for t in range(4):
        a(f"ds_write_b128 v13, {vr(GD+4*t)} offset:{L_GP + 1024*t}")
    a("s_waitcnt lgkmcnt(0)\ns_barrier")
    o = L_GP // 256
    for w in range(4):
        a(f"ds_read2st64_b32 {vr(FA+2*w,2)}, v{AG} offset0:{o+16*w} offset1:{o+16*w+4}")
    a(f"""
    s_cmp_eq_u32 s77, 0
    s_waitcnt lgkmcnt(2)
    v_pk_add_f32 {vr(FA,2)}, {vr(FA,2)}, {vr(FA+2,2)}
    s_waitcnt lgkmcnt(0)
    v_pk_add_f32 {vr(FA+4,2)}, {vr(FA+4,2)}, {vr(FA+6,2)}
    v_pk_add_f32 {vr(FA,2)}, {vr(FA,2)}, {vr(FA+4,2)}
    v_cvt_pk_bf16_f32 v{T0}, v{FA}, v{FA+1}
    s_cbranch_scc0 L_Gup
    v_lshlrev_b32 v{FA}, 16, v{T0}
    v_and_b32 v{FA+1}, 0xffff0000, v{T0}
    v_mul_f32 v{FA}, 0xbfb8aa3b, v{FA}
    v_mul_f32 v{FA+1}, 0xbfb8aa3b, v{FA+1}
    v_exp_f32 v{FA}, v{FA}
    v_exp_f32 v{FA+1}, v{FA+1}
    s_nop 0
    v_add_f32 v{FA}, 1.0, v{FA}
    v_add_f32 v{FA+1}, 1.0, v{FA+1}
    v_rcp_f32 v{FA}, v{FA}
    v_rcp_f32 v{FA+1}, v{FA+1}
    s_nop 0
    v_cvt_pk_bf16_f32 v{T0}, v{FA}, v{FA+1}
    L_Gup:
    v_min_u32 v{T0}, -2, v{T0}
    s_cmp_eq_u32 s66, 0
    s_mov_b32 s66, 0
    s_cbranch_scc0 L_Gwait
    buffer_store_dword v{T0}, v{AAT}, s[28:31], s76 offen
    """)
    stamp(8)
    a(f"""
    s_waitcnt vmcnt(0)
    {'s_sleep %d' % slp if slp else ''}
    buffer_store_dword v{T0}, v{AAT}, s[28:31], s76 offen sc1
    """)
    write_stamps()
    a("s_endpgm")

    a("L_roleD:")
    a(f"""
    s_mov_b32 s32, s56
    s_mov_b32 s33, s57
    s_mov_b32 s34, {1728*1280}
    s_mov_b32 s35, 0x20000
    v_lshrrev_b32 v{T1}, 4, v{LANE}
    v_mul_u32_u24 v{T1}, {8*1280}, v{T1}
    v_and_b32 v{T0}, 15, v0
    v_lshl_add_u32 v{T1}, v{T0}, 3, v{T1}
    s_add_u32 s73, s73, s3
    s_mul_i32 s7, s73, {64*1280}
    s_lshl_b32 s65, s77, 7
    s_add_u32 s7, s7, s65
    s_cmp_lt_u32 s3, s72
    s_cselect_b32 s7, s7, 0x1000000
    v_add_u32 v{WOFF}, s7, v{T1}
    """)
    def ldD(n):
        s, jj = n // 8, n % 8
        def f():
            a(f"s_mov_b32 s65, {(32*s+jj)*1280}")
            a.vmem(f"buffer_load_dwordx2 {vr(RAW+2*n, 2)}, v{WOFF}, s[32:35], s65 offen {ff}", ("d", n))
        return f
    att_tail("D", [ldD(n) for n in range(16)])
    AD, AO, AA1 = 2, 5, 12
    XD = 92
    a(f"""
    v_lshrrev_b32 v{T0}, 2, v0
    v_mul_u32_u24 v{T0}, 3, v{T0}
    v_and_b32 v{T1}, 3, v0
    v_min_u32 v{T1}, 2, v{T1}
    v_add_u32 v{T0}, v{T0}, v{T1}
    v_lshrrev_b32 v{T1}, 6, v{T0}
    v_and_b32 v{T0}, 63, v{T0}
    v_and_b32 v{T2}, 3, v{T0}
    v_lshlrev_b32 v{T2}, 10, v{T2}
    v_lshrrev_b32 v{TT}, 2, v{T0}
    v_lshl_add_u32 v{T2}, v{TT}, 4, v{T2}
    """)
    for k in range(3):
        a(f"""
        v_add_u32 v{TT}, {3*k}, v{T1}
        v_lshrrev_b32 v{TT+1}, 2, v{TT}
        v_lshl_add_u32 v{TT+1}, v{TT+1}, 8, v{T2}
        v_and_b32 v{TT}, 3, v{TT}
        v_lshl_add_u32 v{AD+k}, v{TT}, 2, v{TT+1}
        """)
    a(f"""
    s_lshl_b32 s7, s77, 6
    v_add_u32 v{T0}, s7, v{T0}
    v_mul_u32_u24 v{AO}, 640, v{T1}
    v_add_lshl_u32 v{AO}, v{AO}, v{T0}, 1
    v_mul_u32_u24 v{TT}, 3277, v{T0}
    v_lshrrev_b32 v{TT}, 16, v{TT}
    v_mul_u32_u24 v{TT+1}, 20, v{TT}
    v_sub_u32 v{TT+1}, v{T0}, v{TT+1}
    v_mul_u32_u24 v{TT+2}, 86, v{TT+1}
    v_lshrrev_b32 v{TT+2}, 8, v{TT+2}
    v_mul_u32_u24 v{TT+3}, 3, v{TT+2}
    v_sub_u32 v{TT+3}, v{TT+1}, v{TT+3}
    v_lshl_add_u32 v{TT}, v{TT+2}, 5, v{TT}
    v_lshlrev_b32 v{TT}, 4, v{TT}
    v_lshl_add_u32 v{TT}, v{TT+3}, 2, v{TT}
    v_mul_u32_u24 v{AA1}, {ACC1_B}, v{T1}
    v_add_u32 v{AA1}, v{AA1}, v{TT}
    s_lshl_b32 s7, s3, 12
    v_add_u32 v13, s7, v{AL16}
    s_mov_b32 s78, 0x07060302
    s_mov_b32 s79, 0x05040100
    s_lshl_b32 s76, s73, 10
    s_add_u32 s76, s76, {SU}
    s_add_u32 s74, s76, {27*1024}
    s_mul_i32 s75, s77, 3072
    s_add_u32 s75, s75, {ACC3}
    s_mov_b32 s40, {3*1280}
    s_mov_b32 s41, {6*1280}
    s_mov_b32 s42, {3*ACC1_B}
    s_mov_b32 s43, {6*ACC1_B}
    v_cmp_gt_u32 s[44:45], 0xac, v0
    """.replace("v_cmp_gt_u32 s[44:45], 0xac, v0", "v_cmp_gt_u32 vcc, 0xac, v0\ns_mov_b64 s[44:45], vcc\nv_cmp_gt_u32 vcc, 0xaa, v0\ns_mov_b64 s[52:53], vcc\nv_or_b32 v14, 12, v12"))
    for k in range(3):
        so = ["0", "s40", "s41"][k]
        a(f"buffer_load_ushort v{XD+k}, v{AO}, s[24:27], {so} offen")
    a("s_waitcnt vmcnt(0)")
    a.vm = []
    WT = RING
    transpose(RAW, WT); transpose(RAW + 16, WT + 16)
    for k in range(3):
        a(f"v_lshlrev_b32 v{XD+k}, 16, v{XD+k}")
    SG, UU = BIG, BIG + 4
    a("s_mov_b32 s79, 0")
    a(f"s_mov_b32 s66, {1 if dry else 0}")
    for j in range(8):
        a(f"v_mov_b32 v{SG+j}, 0")
    if dry:
        a("s_branch L_Dbody")
    a("L_Dwait:")
    stamp(6)
    a(f"""
    s_cmp_lt_u32 s3, s72
    s_cbranch_scc0 L_Dbody
    L_Dpoll:
    {spin()}
    buffer_load_dwordx4 {vr(SG)}, v{AL16}, s[28:31], s76 offen sc1
    buffer_load_dwordx4 {vr(UU)}, v{AL16}, s[28:31], s74 offen sc1
    s_waitcnt vmcnt(0)
    v_max3_u32 v{T0}, v{SG}, v{SG+1}, v{SG+2}
    v_max3_u32 v{T1}, v{SG+3}, v{UU}, v{UU+1}
    v_max3_u32 v{T0}, v{T0}, v{UU+2}, v{UU+3}
    v_max_u32 v{T0}, v{T0}, v{T1}
    v_cmp_eq_u32 vcc, -1, v{T0}
    s_cbranch_vccnz L_Dpoll
    """)
    a("L_Dbody:")
    stamp(7)
    HA = BIG + 8; HB = BIG + 12
    for j in range(4):
        a(f"""
        v_lshlrev_b32 v{TT}, 16, v{SG+j}
        v_and_b32 v{TT+1}, 0xffff0000, v{SG+j}
        v_lshlrev_b32 v{TT+2}, 16, v{UU+j}
        v_and_b32 v{TT+3}, 0xffff0000, v{UU+j}
        v_pk_mul_f32 {vr(TT,2)}, {vr(TT,2)}, {vr(TT+2,2)}
        v_cvt_pk_bf16_f32 v{HA+j}, v{TT}, v{TT+1}
        """)
    for j in range(3):
        a(f"v_mov_b32_dpp v{HB+j}, v{HA+j} row_ror:8 {DPPF}")
    a(f"v_mov_b32_dpp v{HB+3}, v{HA+3} row_ror:8 {DPPF}")
    GD = QB
    for s in range(2):
        for t in range(4):
            c = "0" if s == 0 else vr(GD + 4 * t)
            a(f"v_mfma_f32_16x16x32_bf16 {vr(GD+4*t)}, {vr(HB if s else HA)}, {vr(WT+16*s+4*t)}, {c}")
    a("s_nop 4")
    for t in range(4):
        a(f"ds_write_b128 v13, {vr(GD+4*t)} offset:{L_GP + 1024*t}")
    a("s_waitcnt lgkmcnt(0)\ns_barrier")
    R = RAW
    for k in range(3):
        a(f"ds_read2st64_b32 {vr(R+4*k,2)}, v{AD+k} offset0:{o} offset1:{o+16}")
        a(f"ds_read2st64_b32 {vr(R+4*k+2,2)}, v{AD+k} offset0:{o+32} offset1:{o+48}")
    for k in range(3):
        a(f"s_waitcnt lgkmcnt({4-2*k})")
        a(f"v_add_f32 v{R+4*k}, v{R+4*k}, v{R+4*k+1}\nv_add_f32 v{R+4*k+2}, v{R+4*k+2}, v{R+4*k+3}\nv_add_f32 v{R+4*k}, v{R+4*k}, v{R+4*k+2}")
        a(f"v_cndmask_b32 v{R+4*k+1}, v{R+4*k}, 1.0, s[68:69]")
    a(f"""
    s_cmp_eq_u32 s66, 0
    s_cbranch_scc0 L_Dskip
    buffer_atomic_add_f32 v{R+1}, v{AAT}, s[28:31], s75 offen sc0
    buffer_atomic_add_f32 v{R+5}, v{AAT}, s[28:31], s75 offen offset:1024 sc0
    s_cmp_ge_u32 s3, 3
    s_cbranch_scc1 L_Dno2
    s_mov_b64 exec, s[44:45]
    buffer_atomic_add_f32 v{R+9}, v{AAT}, s[28:31], s75 offen offset:2048 sc0
    s_mov_b64 exec, -1
    L_Dno2:
    {spin()}
    buffer_load_dword v{R+3}, v14, s[28:31], 0 offen sc1
    buffer_load_dword v{R+7}, v14, s[28:31], s42 offen sc1
    buffer_load_dword v{R+11}, v14, s[28:31], s43 offen sc1
    buffer_load_dword v{R+2}, v{AA1}, s[28:31], 0 offen sc1
    buffer_load_dword v{R+6}, v{AA1}, s[28:31], s42 offen sc1
    buffer_load_dword v{R+10}, v{AA1}, s[28:31], s43 offen sc1
    s_waitcnt vmcnt(0)
    v_cndmask_b32 v{R+11}, v{R+7}, v{R+11}, s[52:53]
    v_min3_f32 v{R+3}, v{R+3}, v{R+7}, v{R+11}
    v_cmp_neq_f32 vcc, 0x42000000, v{R+3}
    s_cbranch_vccnz L_Dno2
    L_Dskip:
    """)
    stamp(8)
    for k in range(3):
        r = R + 4 * k
        a(f"""
        v_mov_b32_dpp v{r+3}, v{r+1} quad_perm:[3,3,3,3] {DPPF}
        v_add_f32 v{r}, v{r}, v{r+1}
        v_cvt_pk_bf16_f32 v{r}, v{r+2}, v{r}
        v_lshlrev_b32 v{r+2}, 16, v{r}
        v_and_b32 v{r}, 0xffff0000, v{r}
        v_add_f32 v{r+2}, v{r+2}, v{XD+k}
        v_cvt_pk_bf16_f32 v{r+2}, v{r+2}, v{r+2}
        v_and_b32 v{r+2}, 0xffff0000, v{r+2}
        v_add_f32 v{r}, v{r}, v{r+2}
        v_cvt_pk_bf16_f32 v{r}, v{r}, v{r}
        v_cmp_eq_f32 vcc, 0x40e00000, v{r+3}
        s_andn2_b64 s[{46+2*k}:{47+2*k}], vcc, s[68:69]
        """)
    a(f"""
    s_cmp_eq_u32 s66, 0
    s_mov_b32 s66, 0
    s_cbranch_scc1 L_Dstore
    s_barrier
    s_branch L_Dwait
    L_Dstore:
    s_and_b64 s[50:51], s[50:51], s[52:53]
    """)
    for k in range(3):
        so = ["0", "s40", "s41"][k]
        a(f"""
        s_mov_b64 exec, s[{46+2*k}:{47+2*k}]
        s_cbranch_execz L_Dns{k}
        buffer_store_short v{R+4*k}, v{AO}, s[36:39], {so} offen
        L_Dns{k}:
        """)
    a("s_mov_b64 exec, -1")
    write_stamps()
    a("L_end:")
    a("s_endpgm")

    head = open("sequential_preLN__sliding_block_cached__glu_gated_glu__decode.s.ref").read().split("; Override launch")[0]
    out = head + f"; @launch grid=(256,1,1) block=(256,1,1) lds={LDS_BYTES}\n"
    out += '.amdgcn_target "amdgcn-amd-amdhsa--gfx950"\n.text\n'
    out += f".globl {KN}\n.p2align 8\n.type {KN},@function\n{KN}:\n"
    out += "\n".join(a.L) + "\n"
    out += f""".section .rodata,"a"
.p2align 6
.amdhsa_kernel {KN}
  .amdhsa_next_free_vgpr 512
  .amdhsa_next_free_sgpr 102
  .amdhsa_accum_offset 256
  .amdhsa_group_segment_fixed_size 0
  .amdhsa_kernarg_size 96
  .amdhsa_user_sgpr_count 2
  .amdhsa_user_sgpr_kernarg_segment_ptr 1
  .amdhsa_system_sgpr_workgroup_id_x 1
  .amdhsa_float_denorm_mode_32 3
.end_amdhsa_kernel
"""
    return out

if __name__ == "__main__":
    kw = {}
    for x in sys.argv[2:]:
        k, v = x.split("=")
        kw[k] = eval(v)
    open(sys.argv[1], "w").write(gen(**kw))
```

```python
import sys, copy
KN = "sequential_preLN__sliding_block_cached__glu_gated_glu__decode_kernel"

ACC1 = 0
ACC1_B = 3584
ACC3 = 28672
FLAGS = 59392
TICK = FLAGS + 4096
SU = 69632
WS_USED = 31 * 4096
STAMP = 1 << 20

L_Q = 0
L_ML = 4096
L_PV = 5120
L_OP = 9216
L_HN = 30720
HN_STR = 1312
L_GP = 41472
LDS_BYTES = 57856

class Asm:
    def __init__(self):
        self.L = []
        self.vm = []
        self.auto = None
        self.acc = 0
        self.busy = False
    def cost(self, x):
        op = x.split()[0]
        if op.startswith("v_mfma"): return 12
        if op == "s_nop": return 4 * (int(x.split()[1]) + 1)
        if op in ("v_exp_f32", "v_rcp_f32", "v_sqrt_f32"): return 8
        if op == "s_barrier": return 40
        if op == "s_waitcnt" and "lgkm" in x: return 60
        if op.startswith("ds_write_b128"): return 24
        if op.startswith("ds_"): return 8
        return 4
    def __call__(self, s):
        for x in s.split("\n"):
            x = x.strip()
            if x:
                if self.auto and not self.busy and self.acc >= self.auto[0] and x.startswith("v_") and not x.startswith("v_cndmask"):
                    self.busy = True
                    self.acc = 0
                    self.auto[1]()
                    self.busy = False
                self.L.append(x if x.endswith(":") else "  " + x)
                if not x.endswith(":"): self.acc += self.cost(x)
    def vmem(self, s, tag=None):
        self(s)
        self.vm.append(tag)
        assert len(self.vm) <= 63, "too many outstanding vmem"
    def need(self, tag):
        if tag in self.vm:
            i = len(self.vm) - 1 - self.vm[::-1].index(tag)
            n = len(self.vm) - 1 - i
            self(f"s_waitcnt vmcnt({n})")
            self.vm = self.vm[i + 1:]
    def window(self, n):
        if len(self.vm) > n:
            self(f"s_waitcnt vmcnt({n})")
            self.vm = self.vm[len(self.vm) - n:] if n else []

def vr(b, n=4): return f"v[{b}:{b+n-1}]"
def ar(b, n=4): return f"a[{b}:{b+n-1}]"
DPPF = "row_mask:0xf bank_mask:0xf"

def allreduce(a, op, v, t, rows=4):
    for c in ["quad_perm:[1,0,3,2]", "quad_perm:[2,3,0,1]", "row_half_mirror", "row_mirror"]:
        a("s_nop 1")
        a(f"{op}_dpp v{v}, v{v}, v{v} {c} {DPPF}")
    a(f"v_mov_b32 v{t}, v{v}")
    a("s_nop 1")
    a(f"v_permlane16_swap_b32 v{v}, v{t}")
    a("s_nop 0")
    a(f"{op} v{v}, v{v}, v{t}")
    if rows == 4:
        a(f"v_mov_b32 v{t}, v{v}")
        a("s_nop 1")
        a(f"v_permlane32_swap_b32 v{v}, v{t}")
        a("s_nop 0")
        a(f"{op} v{v}, v{v}, v{t}")

def rbf(a, d, s):
    a(f"v_cvt_pk_bf16_f32 v{d}, v{s}, v{s}")
    a(f"v_and_b32 v{d}, 0xffff0000, v{d}")

def mixseq(main, extra, upto=None, skip=0):
    upto = len(main) if upto is None else upto
    seq = list(main[:skip]); acc = 0.0; ri = 0
    for x in main[skip:upto]:
        acc += len(extra) / (upto - skip)
        while acc >= 1.0 - 1e-9 and ri < len(extra):
            seq.append(extra[ri]); ri += 1; acc -= 1.0
        seq.append(x)
    return seq + extra[ri:] + list(main[upto:])

def gen(rot=16, W=10, stamps=False, wq_upto=54, dry=True, tailW=8, bound=200000, slp=6, fpoll='v', kf='nt', vf='nt', wf='nt', ff='nt', hmap='adj', delay=0, diag=''):
    a = Asm()
    def spin():
        return f"s_add_u32 s100, s100, 1\ns_cmp_gt_u32 s100, {bound}\ns_cbranch_scc1 L_end\n" if bound else ''
    LANE, KOFF, VOFF, QOFF, OOFF = 1, 2, 3, 4, 5
    T0, T1 = 6, 7
    M = 8
    XN = 12
    T2 = 15
    BA = [16, 20]
    D = [24, 28]
    QB = 32
    P = 48
    TT = 52
    BIG = 64
    RING = 96; NRING = 20
    NQR = 12
    RAW = 176
    APV, AOP, AAT, AL16 = 84, 85, 89, 90
    WOFF = 91
    if stamps is True:
        stamps = [0, 1, 2, 3, 4, 5, 6, 7, 8, 9]
    def stamp(i):
        if stamps and i in stamps:
            j = stamps.index(i)
            a(f"s_memrealtime s[{80+2*j}:{81+2*j}]")

    HMAP = {'mod': "s_and_b32 s4, s2, 31",
            'adj': "s_and_b32 s4, s2, 7\ns_lshl_b32 s4, s4, 2\ns_bfe_u32 s5, s2, 0x20003\ns_add_u32 s4, s4, s5",
            'adj2': "s_and_b32 s4, s2, 7\ns_lshl_b32 s4, s4, 1\ns_bfe_u32 s5, s2, 0x10003\ns_add_u32 s4, s4, s5\ns_and_b32 s5, s2, 16\ns_add_u32 s4, s4, s5"}[hmap]
    a(f"s_cmp_ge_u32 s2, 256\ns_cbranch_scc1 L_end")
    a("s_load_dwordx16 s[40:55], s[0:1], 0")
    a("s_load_dwordx8 s[56:63], s[0:1], 64")
    a("s_mov_b32 s100, 0")
    if stamps:
        for j in range(10): a(f"s_mov_b32 s{80+2*j}, 0")
    stamp(0)
    if delay:
        a("s_memrealtime s[80:81]")
    a(f"""
    v_lshrrev_b32 v{T0}, 6, v0
    v_and_b32 v{LANE}, 63, v0
    v_readfirstlane_b32 s3, v{T0}
    v_lshrrev_b32 v{T1}, 4, v{LANE}
    v_and_b32 v{T2}, 15, v0
    v_lshlrev_b32 v{VOFF}, 4, v0
    v_and_b32 v{TT}, 3, v0
    v_lshl_add_u32 v{TT}, v{T1}, 2, v{TT}
    v_lshlrev_b32 v{TT}, 4, v{TT}
    v_lshl_add_u32 v{TT}, v{T0}, 10, v{TT}
    v_bfe_u32 v{TT+1}, v0, 2, 2
    v_lshl_add_u32 v{KOFF}, v{TT+1}, 8, v{TT}
    v_mul_u32_u24 v{TT}, 160, v{T0}
    v_add_u32 v{TT}, v{TT}, v{T1}
    v_lshlrev_b32 v{TT+1}, 4, v{T2}
    v_lshl_add_u32 v{QOFF}, v{TT}, 13, v{TT+1}
    v_lshl_add_u32 v{TT+2}, v{T2}, 2, v{TT}
    v_lshlrev_b32 v{TT+2}, 1, v{TT+2}
    v_lshlrev_b32 v{AL16}, 4, v{LANE}
    v_lshlrev_b32 v{TT+3}, 2, v{LANE}
    {HMAP}
    s_lshr_b32 s5, s2, 5
    s_lshl_b32 s6, s5, 5
    s_add_u32 s6, s6, s4
    s_lshl_b32 s6, s6, 20
    s_add_u32 s6, s6, 0xC0000
    s_mul_i32 s64, s2, {rot*1024}
    s_and_b32 s64, s64, 0x3ffff
    s_mul_i32 s66, s5, 1280
    s_lshl_b32 s7, s4, 8
    s_mov_b32 s10, 0x40000
    s_mov_b32 s11, 0x20000
    s_mov_b32 s14, 0x40000
    s_mov_b32 s15, 0x20000
    s_mov_b32 s26, 10240
    s_mov_b32 s27, 0x20000
    s_sub_u32 s18, {640*8192}, s7
    s_mov_b32 s19, 0x20000
    s_waitcnt lgkmcnt(0)
    """)
    stamp("karg")
    a(f"""
    s_mov_b32 s24, s40
    s_mov_b32 s25, s41
    s_add_u32 s8, s42, s6
    s_addc_u32 s9, s43, 0
    s_add_u32 s16, s46, s7
    s_addc_u32 s17, s47, 0
    """)
    a.vmem(f"buffer_load_dwordx4 {vr(BIG)}, v{AL16}, s[24:27], s66 offen", "x")
    a.vmem(f"buffer_load_dword v{BIG+4}, v{TT+3}, s[24:27], s66 offen offset:1024", "x")
    for u in range(3):
        a.vmem(f"buffer_load_ushort v{XN+u}, v{TT+2}, s[24:27], s66 offen offset:{u*128}", "x")

    def ldK(i):
        a(f"s_add_u32 s65, s64, {i*4096}\ns_and_b32 s65, s65, 0x3ffff")
        a.vmem(f"buffer_load_dwordx4 {ar(4*i)}, v{KOFF}, s[8:11], s65 offen {kf}", ("k", i))
    st = {"k": 0, "v": 0, "q": 0}
    def ldV(i):
        assert i - st["v"] < NRING and st["q"] == 40
        a(f"s_add_u32 s65, s64, {i*4096}\ns_and_b32 s65, s65, 0x3ffff")
        a.vmem(f"buffer_load_dwordx4 {vr(RING+4*(i%NRING))}, v{VOFF}, s[12:15], s65 offen {vf}", ("v", i))
    def ldQ(t):
        if diag == 'wqlin':
            a(f"s_mul_i32 s65, s4, {163840-256}\ns_add_u32 s65, s65, {t*4096}")
            a.vmem(f"buffer_load_dwordx4 {vr(RING+4*(t%NQR))}, v{VOFF}, s[16:19], s65 offen {wf}", ("q", t))
            return
        if diag == 'wqrot':
            a(f"s_mul_i32 s65, s4, 5\ns_add_u32 s65, s65, {t}\ns_mul_hi_u32 s7, s65, {(1<<32)//40+1}\ns_mul_i32 s7, s7, 40\ns_sub_u32 s65, s65, s7\ns_lshl_b32 s65, s65, 15")
            a.vmem(f"buffer_load_dwordx4 {vr(RING+4*(t%NQR))}, v{QOFF}, s[16:19], s65 offen {wf}", ("q", t))
            return
        a(f"s_mov_b32 s65, {t*32768}")
        a.vmem(f"buffer_load_dwordx4 {vr(RING+4*(t%NQR))}, v{QOFF}, s[16:19], s65 offen {wf}", ("q", t))
    def ldO(j):
        assert j < st["k"]
        t, G = j // 5, j % 5
        a(f"s_mov_b32 s65, {t*5120}")
        a.vmem(f"buffer_load_dwordx4 {ar(4*j)}, v{OOFF}, s[20:23], s65 offen offset:{G*256} {wf}", ("o", j))
    LD = {"k": ldK, "v": ldV, "q": ldQ, "o": ldO}

    Ks = [("k", i) for i in range(64)]; Qs = [("q", t) for t in range(40)]
    Vs = [("v", i) for i in range(64)]; Os = [("o", j) for j in range(40)]
    seqK = mixseq(Ks, Qs, upto=wq_upto)
    NFIRST = 8
    for x in seqK[:NFIRST]:
        LD[x[0]](x[1])
    a(f"""
    s_add_u32 s12, s44, s6
    s_addc_u32 s13, s45, 0
    s_mul_i32 s7, s4, 163840
    s_add_u32 s20, s48, s7
    s_addc_u32 s21, s49, 0
    s_mov_b32 s22, 163840
    s_mov_b32 s23, 0x20000
    s_mov_b32 s28, s62
    s_mov_b32 s29, s63
    s_mov_b32 s30, {WS_USED}
    s_mov_b32 s31, 0x20000
    s_mov_b32 s36, s58
    s_mov_b32 s37, s59
    s_mov_b32 s38, 10240
    s_mov_b32 s39, 0x20000
    v_lshl_add_u32 v{TT}, v{T0}, 5, v{T1}
    v_mul_u32_u24 v{TT}, 1280, v{TT}
    v_add_u32 v{OOFF}, v{TT}, v{TT+1}
    """)
    a(f"""
    s_cmp_lt_u32 s2, 17
    s_cselect_b32 s7, 0, -1
    s_lshl_b32 s65, s2, 12
    v_mov_b32 v{BIG+8}, s7
    v_mov_b32 v{BIG+9}, s7
    v_mov_b32 v{BIG+10}, s7
    v_mov_b32 v{BIG+11}, s7
    """)
    a.vmem(f"buffer_store_dwordx4 {vr(BIG+8)}, v{VOFF}, s[28:31], s65 offen sc1", "init")
    a(f"""
    v_and_b32 v{TT}, 1, v0
    v_lshlrev_b32 v{TT}, 4, v{TT}
    v_mov_b32 v{TT+1}, 0xffff
    v_lshlrev_b32 v{TT}, v{TT}, v{TT+1}
    v_lshrrev_b32 v{TT+1}, 1, v{T2}
    """)
    for r in range(4):
        a(f"v_cmp_eq_u32 vcc, {r}, v{TT+1}\ns_nop 1\nv_cndmask_b32 v{M+r}, 0, v{TT}, vcc")
    stamp("issued8")
    a.need("x")
    stamp("xarr")
    X = BIG + 12
    for i in range(5):
        a(f"v_lshlrev_b32 v{X+2*i}, 16, v{BIG+i}\nv_and_b32 v{X+2*i+1}, 0xffff0000, v{BIG+i}")
    a(f"v_add_f32 v{TT}, v{X}, v{X+1}")
    for i in range(2, 10):
        a(f"v_add_f32 v{TT}, v{TT}, v{X+i}")
    allreduce(a, "v_add_f32", TT, TT + 1)
    a(f"v_mul_f32 v{TT}, 0x3acccccd, v{TT}")
    a(f"v_mov_b32 v{TT+2}, 0")
    for i in range(10):
        a(f"v_sub_f32 v{X+i}, v{X+i}, v{TT}\nv_fmac_f32 v{TT+2}, v{X+i}, v{X+i}")
    allreduce(a, "v_add_f32", TT + 2, TT + 1)
    a(f"v_mul_f32 v{TT+2}, 0x3acccccd, v{TT+2}")
    rbf(a, TT, TT)
    rbf(a, TT + 2, TT + 2)
    a(f"v_add_f32 v{TT+2}, 0x3727c5ac, v{TT+2}")
    rbf(a, TT + 2, TT + 2)
    a(f"v_sqrt_f32 v{TT+2}, v{TT+2}\ns_nop 0")
    rbf(a, TT + 2, TT + 2)
    a(f"v_rcp_f32 v{TT+2}, v{TT+2}")
    for u in range(3):
        a(f"v_lshlrev_b32 v{XN+u}, 16, v{XN+u}\nv_sub_f32 v{XN+u}, v{XN+u}, v{TT}")
        rbf(a, XN + u, XN + u)
        a(f"v_mul_f32 v{XN+u}, v{XN+u}, v{TT+2}\nv_cvt_pk_bf16_f32 v{XN+u}, v{XN+u}, v{XN+u}")
    a("s_nop 1")

    def selB(dst, src, lane):
        for r in range(4):
            a(f"v_and_b32_dpp v{dst+r}, v{src}, v{M+r} row_newbcast:{lane} {DPPF}")
    def useQ(t):
        B = BA[t & 1]
        selB(B, XN + (t >> 4), t & 15)
        a.need(("q", t))
        stamp(f"q{t}")
        a("s_nop 1")
        c = "0" if t == 0 else vr(D[0])
        a(f"v_mfma_f32_16x16x32_bf16 {vr(D[0])}, {vr(RING+4*(t%NQR))}, {vr(B)}, {c}")
        st["q"] = t + 1

    full = seqK + mixseq(Vs, Os, skip=10, upto=60)
    pos = NFIRST
    qdone = 0
    def issue(n=1):
        nonlocal pos
        for _ in range(n):
            if pos < len(full):
                x = full[pos]; pos += 1
                LD[x[0]](x[1])
    idx = {x: i for i, x in enumerate(full)}
    while qdone < 40:
        while qdone < 40 and idx[("q", qdone)] <= pos - W:
            useQ(qdone); qdone += 1
        if qdone < 40:
            x = full[pos]
            if x[0] == "q":
                assert x[1] - qdone < NQR
            assert x[0] != "v"
            a.window(W + 2)
            issue()
    a(f"""
    v_lshrrev_b32 v{TT}, 4, v{LANE}
    v_and_b32 v{TT+1}, 15, v0
    v_lshl_add_u32 v{TT+2}, v{TT}, 5, v{TT+1}
    v_lshlrev_b32 v{TT+2}, 2, v{TT+2}
    v_and_b32 v{TT+3}, 8, v0
    v_lshl_add_u32 v{TT+2}, v{TT+3}, 8, v{TT+2}
    s_lshl_b32 s7, s3, 9
    v_add_u32 v{TT+2}, s7, v{TT+2}
    v_and_b32 v{TT+3}, 3, v0
    v_lshl_add_u32 v{TT+3}, v{TT}, 2, v{TT+3}
    v_lshlrev_b32 v{TT+3}, 5, v{TT+3}
    """)
    for r in range(4):
        a(f"ds_write_b32 v{TT+2}, v{D[0]+r} offset:{L_Q + r*32}")
    issue()
    a("s_waitcnt lgkmcnt(0)\ns_barrier")
    QP = RAW
    for w in range(4):
        for hf in range(2):
            a(f"ds_read_b128 {vr(QP+8*w+4*hf)}, v{TT+3} offset:{L_Q + w*512 + hf*16}")
    assert "init" not in a.vm
    a(f"""
    s_cmp_lt_u32 s2, 31
    s_cselect_b32 s7, s3, 1
    s_cmp_eq_u32 s7, 0
    s_cbranch_scc0 L_nosig
    s_mov_b32 s7, 1
    s_atomic_add s7, s[60:61], 0x0
    L_nosig:
    s_waitcnt lgkmcnt(0)
    """)
    for j in range(8):
        a(f"v_add_f32 v{QP+j}, v{QP+j}, v{QP+8+j}\nv_add_f32 v{QP+16+j}, v{QP+16+j}, v{QP+24+j}\nv_add_f32 v{QP+j}, v{QP+j}, v{QP+16+j}")
    for j in range(4):
        a(f"v_cvt_pk_bf16_f32 v{QP+j}, v{QP+2*j}, v{QP+2*j+1}")
    for t in range(4):
        m = 0x000F000F << (4 * t)
        a(f"s_mov_b32 s68, {m:#x}\ns_mov_b32 s69, {m:#x}")
        for j in range(4):
            a(f"v_cndmask_b32 v{QB+4*t+j}, 0, v{QP+j}, s[68:69]")
    for s in range(1, 4):
        m = 0x11111111 << s
        a(f"s_mov_b32 s{68+2*s}, {m:#x}\ns_mov_b32 s{69+2*s}, {m:#x}")
    issue()
    stamp(1)
    def post(u):
        Dd = D[u & 1]; dst = P + (u >> 2) if (u & 3) == 0 else TT
        a(f"v_mov_b32_dpp v{TT}, v{Dd} quad_perm:[0,0,0,0] {DPPF}")
        a(f"v_add_f32_dpp v{TT}, v{Dd+1}, v{TT} quad_perm:[1,1,1,1] {DPPF}")
        a(f"v_add_f32_dpp v{TT}, v{Dd+2}, v{TT} quad_perm:[2,2,2,2] {DPPF}")
        a(f"v_add_f32_dpp v{dst}, v{Dd+3}, v{TT} quad_perm:[3,3,3,3] {DPPF}")
        if u & 3:
            s = u & 3
            a(f"v_cndmask_b32 v{P+(u>>2)}, v{P+(u>>2)}, v{TT}, s[{68+2*s}:{69+2*s}]")
        else:
            a("s_nop 0")
    for u in range(16):
        while idx[("k", 4 * u + 3)] > pos - min(W, 7):
            issue()
        a.need(("k", 4 * u + 3))
        for t in range(4):
            c = "0" if t == 0 else vr(D[u & 1])
            a(f"v_mfma_f32_16x16x32_bf16 {vr(D[u&1])}, {ar(16*u+4*t)}, {vr(QB+4*t)}, {c}")
        st["k"] = 4 * u + 4
        if u == 0:
            a("s_nop 4")
        else:
            post(u - 1)
        if u % 3 == 2:
            assert full[pos][0] != "o" or full[pos][1] < 4 * u
            issue()
    a("s_nop 3")
    post(15)
    S = TT + 2
    for i in range(2):
        a(f"v_cvt_pk_bf16_f32 v{TT}, v{P+2*i}, v{P+2*i+1}")
        a(f"v_lshlrev_b32 v{S+2*i}, 16, v{TT}\nv_and_b32 v{S+2*i+1}, 0xffff0000, v{TT}")
        a(f"v_mul_f32 v{S+2*i}, 0x3db504f3, v{S+2*i}\nv_mul_f32 v{S+2*i+1}, 0x3db504f3, v{S+2*i+1}")
        a(f"v_cvt_pk_bf16_f32 v{TT}, v{S+2*i}, v{S+2*i+1}")
        a(f"v_lshlrev_b32 v{S+2*i}, 16, v{TT}\nv_and_b32 v{S+2*i+1}, 0xffff0000, v{TT}")
    MX, LS = TT + 6, TT + 7
    a(f"v_max_f32 v{MX}, v{S}, v{S+1}\nv_max3_f32 v{MX}, v{MX}, v{S+2}, v{S+3}")
    allreduce(a, "v_max_f32", MX, TT)
    issue()
    for i in range(4):
        a(f"v_sub_f32 v{P+i}, v{S+i}, v{MX}\nv_mul_f32 v{P+i}, 0x3fb8aa3b, v{P+i}\nv_exp_f32 v{P+i}, v{P+i}")
    a(f"s_nop 0\nv_add_f32 v{LS}, v{P}, v{P+1}\nv_add_f32 v{TT}, v{P+2}, v{P+3}\nv_add_f32 v{LS}, v{LS}, v{TT}")
    allreduce(a, "v_add_f32", LS, TT)
    a(f"s_lshl_b32 s7, s3, 3\nv_mov_b32 v{TT}, s7\nds_write_b64 v{TT}, v[{MX}:{LS}] offset:{L_ML}")
    issue()
    a(f"s_waitcnt lgkmcnt(0)\ns_barrier\nv_mov_b32 v{TT}, 0")
    ML = BIG
    a(f"ds_read_b128 {vr(ML)}, v{TT} offset:{L_ML}\nds_read_b128 {vr(ML+4)}, v{TT} offset:{L_ML+16}")
    issue()
    a("s_waitcnt lgkmcnt(0)")
    a(f"v_max_f32 v{MX}, v{ML}, v{ML+2}\nv_max3_f32 v{MX}, v{MX}, v{ML+4}, v{ML+6}")
    for w in range(4):
        a(f"v_sub_f32 v{ML+2*w}, v{ML+2*w}, v{MX}\nv_mul_f32 v{ML+2*w}, 0x3fb8aa3b, v{ML+2*w}\nv_exp_f32 v{ML+2*w}, v{ML+2*w}")
    for i in range(4):
        a(f"v_sub_f32 v{P+i}, v{S+i}, v{MX}\nv_mul_f32 v{P+i}, 0x3fb8aa3b, v{P+i}\nv_exp_f32 v{P+i}, v{P+i}")
    a(f"v_mul_f32 v{LS}, v{ML}, v{ML+1}")
    for w in range(1, 4):
        a(f"v_fmac_f32 v{LS}, v{ML+2*w}, v{ML+2*w+1}")
    a(f"v_rcp_f32 v{LS}, v{LS}\ns_nop 0")
    PP = XN - 0
    for i in range(4):
        a(f"v_mul_f32 v{P+i}, v{P+i}, v{LS}")
    for i in range(4):
        a(f"v_cvt_pk_bf16_f32 v{P+i}, v{P+i}, v{P+i}")
    stamp(2)
    a(f"""
    v_lshrrev_b32 v{T1}, 4, v{LANE}
    v_and_b32 v{TT}, 1, v0
    v_lshl_add_u32 v{TT}, v{TT}, 2, v{T1}
    s_lshl_b32 s7, s3, 4
    v_add_u32 v{TT}, s7, v{TT}
    v_bfe_u32 v{TT+1}, v0, 1, 2
    v_lshlrev_b32 v{TT+1}, 2, v{TT+1}
    v_lshl_add_u32 v{APV}, v{TT}, 4, v{TT+1}
    v_bfe_u32 v{TT}, v0, 2, 5
    v_mul_u32_u24 v{TT}, 20, v{TT}
    v_lshrrev_b32 v{TT+1}, 7, v0
    v_mul_u32_u24 v{TT+1}, 3, v{TT+1}
    v_and_b32 v{TT+2}, 3, v0
    v_add3_u32 v{TT}, v{TT}, v{TT+1}, v{TT+2}
    v_lshlrev_b32 v{AAT}, 2, v0
    """)
    for k in range(4):
        a(f"""
        v_add_u32 v{TT+1}, {6*k}, v{TT}
        v_lshrrev_b32 v{TT+2}, 5, v{TT+1}
        v_lshlrev_b32 v{TT+2}, 8, v{TT+2}
        v_and_b32 v{TT+3}, 7, v{TT+1}
        v_lshl_add_u32 v{TT+2}, v{TT+3}, 4, v{TT+2}
        v_bfe_u32 v{TT+3}, v{TT+1}, 3, 2
        v_lshl_add_u32 v{AOP+k}, v{TT+3}, 2, v{TT+2}
        """)
    a(f"""
    s_and_b32 s70, s2, 7
    s_lshr_b32 s71, s2, 3
    s_min_u32 s72, s70, 3
    s_mul_i32 s73, s70, 3
    s_add_u32 s73, s73, s72
    s_cmp_lt_u32 s70, 3
    s_cselect_b32 s72, 4, 3
    s_lshl_b32 s7, s70, 8
    s_add_u32 s7, s7, {TICK}
    s_add_u32 s74, s62, s7
    s_addc_u32 s75, s63, 0
    s_mul_i32 s67, s5, {ACC1_B}
    s_mov_b32 s68, 0x88888888
    s_mov_b32 s69, 0x88888888
    """)

    def usePV(i):
        B = BA[i & 1]; u, t = i >> 2, i & 3
        selB(B, P + (u >> 2), 4 * t + (u & 3))
        a.need(("v", i))
        stamp(f"v{i}")
        a("s_nop 1")
        c = "0" if i == 0 else vr(D[0])
        a(f"v_mfma_f32_16x16x32_bf16 {vr(D[0])}, {vr(RING+4*(i%NRING))}, {vr(B)}, {c}")
        st["v"] = i + 1
    vdone = 0
    checked = False
    while pos < len(full):
        n = 0
        while vdone < 64 - tailW and idx[("v", vdone)] <= pos - W and n < 3:
            usePV(vdone); vdone += 1; n += 1
        x = full[pos]
        if x[0] == "v":
            while x[1] - vdone >= NRING:
                usePV(vdone); vdone += 1
        a.window(W + 6)
        issue()
        if x == ("v", 36):
            a(f"v_mov_b32 v{TT+1}, 0")
            a.vmem(f"global_load_dword v{TT}, v{TT+1}, s[60:61] sc1", "ichk")
        if x == ("v", 48):
            a.need("ichk")
            a(f"""
            L_ichk:
            v_cmp_gt_u32 vcc, 31, v{TT}
            s_cbranch_vccz L_iok
            {spin()}
            global_load_dword v{TT}, v{TT+1}, s[60:61] sc1
            s_waitcnt vmcnt(0)
            s_branch L_ichk
            L_iok:
            """)
    while vdone < 64 - tailW:
        usePV(vdone); vdone += 1
    stamp(3)
    a(f"""
    s_lshl_b32 s7, s72, 1
    s_cmp_lt_u32 s71, s7
    s_cbranch_scc1 L_roleG
    s_sub_u32 s77, s71, 8
    s_cmp_lt_u32 s77, 10
    s_cbranch_scc1 L_roleD
    """)
    vm0 = list(a.vm)

    def att_tail(name, pre):
        a.vm = list(vm0)
        pre = list(pre)
        per = (len(pre) + tailW - 1) // tailW
        for i in range(64 - tailW, 64):
            usePV(i)
            if i < 63:
                for _ in range(per):
                    if pre: pre.pop(0)()
        for j in range(40):
            assert ("o", j) not in a.vm
        stamp("pvlast")
        a(f"s_lshl_b32 s7, s3, 10\nv_add_u32 v{TT}, s7, v{AL16}\ns_mul_i32 s7, s3, 5120\nv_add_u32 v{T2}, s7, v{AL16}")
        a("s_nop 3")
        a(f"ds_write_b128 v{TT}, {vr(D[0])} offset:{L_PV}")
        a("s_waitcnt lgkmcnt(0)\ns_barrier")
        assert L_PV % 256 == 0
        o = L_PV // 256
        a(f"ds_read2st64_b32 v[{BA[0]}:{BA[0]+1}], v{APV} offset0:{o} offset1:{o+4}")
        a(f"ds_read2st64_b32 v[{BA[0]+2}:{BA[0]+3}], v{APV} offset0:{o+8} offset1:{o+12}")
        for f in pre: f()
        a("s_waitcnt lgkmcnt(0)")
        stamp(4)
        a(f"""
        v_add_f32 v{BA[0]}, v{BA[0]}, v{BA[0]+1}
        v_add_f32 v{BA[0]+2}, v{BA[0]+2}, v{BA[0]+3}
        s_mov_b32 s76, 1
        v_add_f32 v{BA[0]}, v{BA[0]}, v{BA[0]+2}
        s_cmp_eq_u32 s3, 0
        v_cvt_pk_bf16_f32 v{T0}, v{BA[0]}, v{BA[0]}
        s_cbranch_scc0 L_notick{name}
        s_atomic_add s76, s[74:75], 0x0 glc
        L_notick{name}:
        s_nop 0
        """)
        OB = QB; OD = BIG
        selB(OB, T0, 0)
        order = [(t, G) for t in range(6) for G in range(5)] + [(t, G) for G in range(5) for t in (6, 7)]
        pend = [(t, r) for t in range(1, 8) for r in range(4)]
        a("s_nop 1")
        lastm = {}
        wr = 0
        for n, (t, G) in enumerate(order):
            c = "0" if t == 0 else vr(OD + 4 * G)
            a(f"v_mfma_f32_16x16x32_bf16 {vr(OD+4*G)}, {ar(4*(5*t+G))}, {vr(OB+4*t)}, {c}")
            if pend and not (n % 5 >= 3 and pend[0][0] == t + 1):
                k = 2 if (n % 5 == 0 and n < 5) or pend[0][0] == t + 1 else 1
                for _ in range(k):
                    if pend:
                        tt, r = pend.pop(0)
                        a(f"v_and_b32_dpp v{OB+4*tt+r}, v{T0}, v{M+r} row_newbcast:{tt} {DPPF}")
        assert not pend
        stamp("omfma")
        a(f"ds_write_b128 v{T2}, {vr(OD)} offset:{L_OP}")
        a("s_nop 0")
        a(f"ds_write_b128 v{T2}, {vr(OD+4)} offset:{L_OP+1024}")
        a("s_nop 0")
        a(f"ds_write_b128 v{T2}, {vr(OD+8)} offset:{L_OP+2048}")
        a("s_nop 0")
        a(f"ds_write_b128 v{T2}, {vr(OD+12)} offset:{L_OP+3072}")
        a("s_nop 0")
        a(f"ds_write_b128 v{T2}, {vr(OD+16)} offset:{L_OP+4096}")
        a(f"""
        s_waitcnt lgkmcnt(0)
        s_cmp_eq_u32 s76, 31
        s_cbranch_scc0 L_noflag{name}
        v_lshlrev_b32 v{T0}, 8, v{LANE}
        v_mov_b32 v{T1}, 1
        s_lshl_b32 s7, s70, 2
        s_add_u32 s7, s7, {FLAGS}
        s_mov_b64 exec, 0xffff
        buffer_store_dword v{T1}, v{T0}, s[28:31], s7 offen sc1
        s_mov_b64 exec, -1
        L_noflag{name}:
        s_barrier
        """)
        a.vm.append("maybe")
        o = L_OP // 256
        R = QB
        for k in range(4):
            a(f"ds_read2st64_b32 v[{R+4*k}:{R+4*k+1}], v{AOP+k} offset0:{o} offset1:{o+20}")
            a(f"ds_read2st64_b32 v[{R+4*k+2}:{R+4*k+3}], v{AOP+k} offset0:{o+40} offset1:{o+60}")
        for k in range(4):
            if k == 3:
                a(f"s_cmp_ge_u32 s3, 2\ns_cbranch_scc1 L_no3{name}")
            a(f"s_waitcnt lgkmcnt({6-2*k})")
            a(f"v_add_f32 v{R+4*k}, v{R+4*k}, v{R+4*k+1}\nv_add_f32 v{R+4*k+2}, v{R+4*k+2}, v{R+4*k+3}\nv_add_f32 v{R+4*k}, v{R+4*k}, v{R+4*k+2}")
            a(f"v_cndmask_b32 v{R+4*k}, v{R+4*k}, 1.0, s[68:69]")
            a(f"buffer_atomic_add_f32 v{R+4*k}, v{AAT}, s[28:31], s67 offen offset:{ACC1 + k*1024}")
        a(f"L_no3{name}:")
        a("s_waitcnt lgkmcnt(0)")
        stamp(5)

    def transpose(src, dst):
        for t in range(4):
            for p in range(4):
                sel = "s78" if t & 1 else "s79"
                a(f"v_perm_b32 v{dst+4*t+p}, v{src+2*(2*p+1)+(t>>1)}, v{src+2*(2*p)+(t>>1)}, {sel}")

    dl = [0]
    def write_stamps():
        if delay:
            dl[0] += 1
            a(f"L_dl{dl[0]}:\ns_memrealtime s[82:83]\ns_waitcnt lgkmcnt(0)\ns_sub_u32 s82, s82, s80\ns_cmp_lt_u32 s82, {delay}\ns_cbranch_scc1 L_dl{dl[0]}")
        if stamps:
            a("s_waitcnt vmcnt(0)")
            stamp(9)
            a("s_waitcnt lgkmcnt(0)")
            for i in range(10):
                a(f"v_mov_b32 v{BIG+i}, s{80+2*i}")
            a(f"s_getreg_b32 s7, hwreg(HW_REG_XCC_ID)\nv_mov_b32 v{BIG+10}, s7\nv_mov_b32 v{BIG+11}, s79")
            a(f"s_lshl_b32 s7, s2, 2\ns_add_u32 s7, s7, s3\ns_lshl_b32 s7, s7, 6\ns_add_u32 s7, s7, {STAMP}\nv_mov_b32 v{T0}, s7")
            for i in range(3):
                a(f"global_store_dwordx4 v{T0}, {vr(BIG+4*i)}, s[62:63] offset:{16*i}")

    att_tail("N", [])
    if stamps:
        a("s_mov_b32 s79, 0")
    write_stamps()
    a("s_endpgm")

    a("L_roleG:")
    a(f"""
    s_lshr_b32 s7, s71, 1
    s_add_u32 s73, s73, s7
    s_and_b32 s77, s71, 1
    s_cmp_eq_u32 s77, 0
    s_cselect_b32 s32, s52, s54
    s_cselect_b32 s33, s53, s55
    s_mov_b32 s34, {640*3456}
    s_mov_b32 s35, 0x20000
    v_lshrrev_b32 v{T1}, 4, v{LANE}
    v_mul_u32_u24 v{T1}, {8*3456}, v{T1}
    v_and_b32 v{T0}, 15, v0
    v_lshl_add_u32 v{T1}, v{T0}, 3, v{T1}
    s_mul_i32 s7, s3, {160*3456}
    s_lshl_b32 s65, s73, 7
    s_add_u32 s7, s7, s65
    v_add_u32 v{WOFF}, s7, v{T1}
    """)
    def ldG(n):
        s, jj = n // 8, n % 8
        def f():
            a(f"s_mov_b32 s65, {(32*s+jj)*3456}")
            a.vmem(f"buffer_load_dwordx2 {vr(RAW+2*n, 2)}, v{WOFF}, s[32:35], s65 offen {ff}", ("g", n))
        return f
    att_tail("G", [ldG(n) for n in range(16)])
    for n in range(16, 40):
        ldG(n)()
    XR = QB
    AX, AA, AH, AF, AG = 2, 3, 4, 5, 12
    a(f"""
    v_lshrrev_b32 v{T0}, 5, v0
    v_and_b32 v{T1}, 31, v0
    v_mul_u32_u24 v{T2}, 40, v{T1}
    v_mul_u32_u24 v{AX}, 1280, v{T0}
    v_add_u32 v{AX}, v{AX}, v{T2}
    v_mul_u32_u24 v{AH}, {HN_STR}, v{T0}
    v_add_u32 v{AH}, v{AH}, v{T2}
    v_mul_u32_u24 v{AA}, {ACC1_B}, v{T0}
    v_lshl_add_u32 v{AA}, v{T1}, 4, v{AA}
    """)
    for i in range(5):
        a.vmem(f"buffer_load_dwordx2 {vr(XR+2*i, 2)}, v{AX}, s[24:27], 0 offen offset:{8*i}", "xr")
    a(f"""
    v_and_b32 v{T0}, 7, v0
    v_mul_u32_u24 v{AF}, {HN_STR}, v{T0}
    v_lshrrev_b32 v{T1}, 4, v{LANE}
    v_lshl_add_u32 v{AF}, v{T1}, 4, v{AF}
    s_mul_i32 s7, s3, 320
    v_add_u32 v{AF}, s7, v{AF}
    v_bfe_u32 v{T0}, v0, 5, 1
    v_lshlrev_b32 v{T0}, 3, v{T0}
    s_lshl_b32 s7, s3, 1
    v_bfe_u32 v{T1}, v0, 1, 1
    v_add3_u32 v{T0}, v{T0}, s7, v{T1}
    v_bfe_u32 v{T1}, v0, 4, 1
    v_lshl_add_u32 v{T0}, v{T1}, 4, v{T0}
    v_lshlrev_b32 v{T0}, 4, v{T0}
    v_and_b32 v{T1}, 12, v0
    v_add_u32 v{T0}, v{T0}, v{T1}
    v_and_b32 v{T1}, 1, v0
    v_lshl_add_u32 v{AG}, v{T1}, 11, v{T0}
    s_lshl_b32 s7, s3, 12
    v_add_u32 v13, s7, v{AL16}
    s_mov_b32 s78, 0x07060302
    s_mov_b32 s79, 0x05040100
    v_and_b32 v14, 7, v0
    v_lshlrev_b32 v14, 2, v14
    s_mul_i32 s76, s77, 27
    s_add_u32 s76, s76, s73
    s_and_b32 s7, {'s76' if fpoll == 's' else 's2'}, 15
    s_lshl_b32 s7, s7, 8
    s_add_u32 s7, s7, {FLAGS}
    s_add_u32 s74, s62, s7
    s_addc_u32 s75, s63, 0
    s_lshl_b32 s76, s76, 10
    s_add_u32 s76, s76, {SU}
    """)
    WT = RING
    younger = 24 + 5
    a(f"s_waitcnt vmcnt({younger})")
    transpose(RAW, WT); transpose(RAW + 16, WT + 16)
    for s in range(2, 5):
        a(f"s_waitcnt vmcnt({(4-s)*8+5})")
        transpose(RAW + 16 * s, WT + 16 * s)
    a("s_waitcnt vmcnt(0)")
    a.vm = []
    stamp("wready")
    XF = RAW + 32
    for i in range(10):
        a(f"v_lshlrev_b32 v{XF+2*i}, 16, v{XR+i}\nv_and_b32 v{XF+2*i+1}, 0xffff0000, v{XR+i}")
    AC = RAW
    a("s_mov_b32 s79, 0")
    a(f"s_mov_b32 s66, {1 if dry else 0}")
    if dry:
        a("s_branch L_Gbody")
    if fpoll == 's':
        POLL = """s_load_dwordx8 s[40:47], s[74:75], 0x0 glc
        s_waitcnt lgkmcnt(0)
        s_and_b32 s40, s40, s41
        s_and_b32 s42, s42, s43
        s_and_b32 s44, s44, s45
        s_and_b32 s46, s46, s47
        s_and_b32 s40, s40, s42
        s_and_b32 s44, s44, s46
        s_and_b32 s40, s40, s44
        s_cbranch_scc0 L_Gpoll"""
    else:
        POLL = f"""global_load_dword v{T1}, v14, s[74:75] sc1
        s_waitcnt vmcnt(0)
        v_cmp_eq_u32 vcc, 0, v{T1}
        s_cbranch_vccnz L_Gpoll"""
    a("L_Gwait:")
    stamp("drydone")
    a(f"""
    s_cmp_eq_u32 s3, 0
    s_cbranch_scc0 L_Gbar
    L_Gpoll:
    {spin()}
    {POLL}
    L_Gbar:
    s_barrier
    """)
    stamp(6)
    a("L_Gread:")
    a(spin())
    for i in range(7):
        a(f"buffer_load_dwordx4 {vr(AC+4*i)}, v{AA}, s[28:31], 0 offen offset:{ACC1 + 512*i} sc1")
    if stamps:
        a("s_add_u32 s79, s79, 1")
    a(f"""
    s_waitcnt vmcnt(0)
    v_min3_f32 v{T0}, v{AC+3}, v{AC+7}, v{AC+11}
    v_min3_f32 v{T1}, v{AC+15}, v{AC+19}, v{AC+23}
    v_min3_f32 v{T0}, v{T0}, v{T1}, v{AC+27}
    v_cmp_neq_f32 vcc, 0x42000000, v{T0}
    s_cbranch_vccnz L_Gread
    """)
    stamp(7)
    a("L_Gbody:")
    H = RAW + 52
    val = [AC + 4 * (e // 3) + e % 3 for e in range(20)]
    for i in range(10):
        a(f"v_cvt_pk_bf16_f32 v{T0}, v{val[2*i]}, v{val[2*i+1]}")
        a(f"v_lshlrev_b32 v{H+2*i}, 16, v{T0}\nv_and_b32 v{H+2*i+1}, 0xffff0000, v{T0}")
        a(f"v_pk_add_f32 {vr(H+2*i,2)}, {vr(H+2*i,2)}, {vr(XF+2*i,2)}")
        a(f"v_cvt_pk_bf16_f32 v{T0}, v{H+2*i}, v{H+2*i+1}")
        a(f"v_lshlrev_b32 v{H+2*i}, 16, v{T0}\nv_and_b32 v{H+2*i+1}, 0xffff0000, v{T0}")
        if i == 1:
            a(f"v_pk_add_f32 {vr(TT,2)}, {vr(H,2)}, {vr(H+2,2)}")
        elif i > 1:
            a(f"v_pk_add_f32 {vr(TT,2)}, {vr(TT,2)}, {vr(H+2*i,2)}")
    a(f"v_add_f32 v{TT}, v{TT}, v{TT+1}")
    allreduce(a, "v_add_f32", TT, TT + 1, rows=2)
    a(f"v_mul_f32 v{TT}, 0xbacccccd, v{TT}")
    rbf(a, TT + 2, TT)
    for i in range(10):
        a(f"v_pk_add_f32 {vr(TT+4,2)}, {vr(H+2*i,2)}, {vr(TT,2)} op_sel_hi:[1,0]")
        if i == 0:
            a(f"v_pk_mul_f32 {vr(TT+6,2)}, {vr(TT+4,2)}, {vr(TT+4,2)}")
        else:
            a(f"v_pk_fma_f32 {vr(TT+6,2)}, {vr(TT+4,2)}, {vr(TT+4,2)}, {vr(TT+6,2)}")
    a(f"v_add_f32 v{TT+6}, v{TT+6}, v{TT+7}")
    steps = ["quad_perm:[1,0,3,2]", "quad_perm:[2,3,0,1]", "row_half_mirror", "row_mirror"]
    for i in range(10):
        a(f"v_pk_add_f32 {vr(H+2*i,2)}, {vr(H+2*i,2)}, {vr(TT+2,2)} op_sel_hi:[1,0]")
        a(f"v_cvt_pk_bf16_f32 v{T0}, v{H+2*i}, v{H+2*i+1}")
        a(f"v_lshlrev_b32 v{H+2*i}, 16, v{T0}\nv_and_b32 v{H+2*i+1}, 0xffff0000, v{T0}")
        V_ = TT + 6
        if i < 4:
            a(f"v_add_f32_dpp v{V_}, v{V_}, v{V_} {steps[i]} {DPPF}")
            if i == 3:
                a(f"v_mov_b32 v{V_+1}, v{V_}")
        elif i == 4:
            a(f"v_permlane16_swap_b32 v{V_}, v{V_+1}")
        elif i == 5:
            a(f"v_add_f32 v{V_}, v{V_}, v{V_+1}\nv_mul_f32 v{V_}, 0x3acccccd, v{V_}")
            rbf(a, V_, V_)
            a(f"v_add_f32 v{V_}, 0x3727c5ac, v{V_}")
            rbf(a, V_, V_)
            a(f"v_sqrt_f32 v{V_}, v{V_}")
        elif i == 6:
            rbf(a, V_, V_)
            a(f"v_rcp_f32 v{V_}, v{V_}")
    stamp("b1")
    HP = AC
    for i in range(10):
        a(f"v_pk_mul_f32 {vr(H+2*i,2)}, {vr(H+2*i,2)}, {vr(TT+6,2)} op_sel_hi:[1,0]")
        a(f"v_cvt_pk_bf16_f32 v{HP+i}, v{H+2*i}, v{H+2*i+1}")
        if i & 1:
            a(f"ds_write_b64 v{AH}, {vr(HP+i-1,2)} offset:{L_HN + 4*(i-1)}")
    a("s_waitcnt lgkmcnt(0)\ns_barrier")
    FA = BIG
    for s in range(5):
        a(f"ds_read_b128 {vr(FA+4*s)}, v{AF} offset:{L_HN + 64*s}")
    GD = QB
    for s in range(5):
        a(f"s_waitcnt lgkmcnt({4-s})")
        for t in range(4):
            c = "0" if s == 0 else vr(GD + 4 * t)
            a(f"v_mfma_f32_16x16x32_bf16 {vr(GD+4*t)}, {vr(FA+4*s)}, {vr(WT+16*s+4*t)}, {c}")
    a("s_nop 4")
    stamp("b2")
    for t in range(4):
        a(f"ds_write_b128 v13, {vr(GD+4*t)} offset:{L_GP + 1024*t}")
    a("s_waitcnt lgkmcnt(0)\ns_barrier")
    o = L_GP // 256
    for w in range(4):
        a(f"ds_read2st64_b32 {vr(FA+2*w,2)}, v{AG} offset0:{o+16*w} offset1:{o+16*w+4}")
    a(f"""
    s_cmp_eq_u32 s77, 0
    s_waitcnt lgkmcnt(2)
    v_pk_add_f32 {vr(FA,2)}, {vr(FA,2)}, {vr(FA+2,2)}
    s_waitcnt lgkmcnt(0)
    v_pk_add_f32 {vr(FA+4,2)}, {vr(FA+4,2)}, {vr(FA+6,2)}
    v_pk_add_f32 {vr(FA,2)}, {vr(FA,2)}, {vr(FA+4,2)}
    v_cvt_pk_bf16_f32 v{T0}, v{FA}, v{FA+1}
    s_cbranch_scc0 L_Gup
    v_lshlrev_b32 v{FA}, 16, v{T0}
    v_and_b32 v{FA+1}, 0xffff0000, v{T0}
    v_mul_f32 v{FA}, 0xbfb8aa3b, v{FA}
    v_mul_f32 v{FA+1}, 0xbfb8aa3b, v{FA+1}
    v_exp_f32 v{FA}, v{FA}
    v_exp_f32 v{FA+1}, v{FA+1}
    s_nop 0
    v_add_f32 v{FA}, 1.0, v{FA}
    v_add_f32 v{FA+1}, 1.0, v{FA+1}
    v_rcp_f32 v{FA}, v{FA}
    v_rcp_f32 v{FA+1}, v{FA+1}
    s_nop 0
    v_cvt_pk_bf16_f32 v{T0}, v{FA}, v{FA+1}
    L_Gup:
    v_min_u32 v{T0}, -2, v{T0}
    s_cmp_eq_u32 s66, 0
    s_mov_b32 s66, 0
    s_cbranch_scc0 L_Gwait
    buffer_store_dword v{T0}, v{AAT}, s[28:31], s76 offen
    """)
    stamp(8)
    a(f"""
    s_waitcnt vmcnt(0)
    {'s_sleep %d' % slp if slp else ''}
    buffer_store_dword v{T0}, v{AAT}, s[28:31], s76 offen sc1
    """)
    write_stamps()
    a("s_endpgm")

    a("L_roleD:")
    a(f"""
    s_mov_b32 s32, s56
    s_mov_b32 s33, s57
    s_mov_b32 s34, {1728*1280}
    s_mov_b32 s35, 0x20000
    v_lshrrev_b32 v{T1}, 4, v{LANE}
    v_mul_u32_u24 v{T1}, {8*1280}, v{T1}
    v_and_b32 v{T0}, 15, v0
    v_lshl_add_u32 v{T1}, v{T0}, 3, v{T1}
    s_add_u32 s73, s73, s3
    s_mul_i32 s7, s73, {64*1280}
    s_lshl_b32 s65, s77, 7
    s_add_u32 s7, s7, s65
    s_cmp_lt_u32 s3, s72
    s_cselect_b32 s7, s7, 0x1000000
    v_add_u32 v{WOFF}, s7, v{T1}
    """)
    def ldD(n):
        s, jj = n // 8, n % 8
        def f():
            a(f"s_mov_b32 s65, {(32*s+jj)*1280}")
            a.vmem(f"buffer_load_dwordx2 {vr(RAW+2*n, 2)}, v{WOFF}, s[32:35], s65 offen {ff}", ("d", n))
        return f
    att_tail("D", [ldD(n) for n in range(16)])
    AD, AO, AA1 = 2, 5, 12
    XD = 92
    a(f"""
    v_lshrrev_b32 v{T0}, 2, v0
    v_mul_u32_u24 v{T0}, 3, v{T0}
    v_and_b32 v{T1}, 3, v0
    v_min_u32 v{T1}, 2, v{T1}
    v_add_u32 v{T0}, v{T0}, v{T1}
    v_lshrrev_b32 v{T1}, 6, v{T0}
    v_and_b32 v{T0}, 63, v{T0}
    v_and_b32 v{T2}, 3, v{T0}
    v_lshlrev_b32 v{T2}, 10, v{T2}
    v_lshrrev_b32 v{TT}, 2, v{T0}
    v_lshl_add_u32 v{T2}, v{TT}, 4, v{T2}
    """)
    for k in range(3):
        a(f"""
        v_add_u32 v{TT}, {3*k}, v{T1}
        v_lshrrev_b32 v{TT+1}, 2, v{TT}
        v_lshl_add_u32 v{TT+1}, v{TT+1}, 8, v{T2}
        v_and_b32 v{TT}, 3, v{TT}
        v_lshl_add_u32 v{AD+k}, v{TT}, 2, v{TT+1}
        """)
    a(f"""
    s_lshl_b32 s7, s77, 6
    v_add_u32 v{T0}, s7, v{T0}
    v_mul_u32_u24 v{AO}, 640, v{T1}
    v_add_lshl_u32 v{AO}, v{AO}, v{T0}, 1
    v_mul_u32_u24 v{TT}, 3277, v{T0}
    v_lshrrev_b32 v{TT}, 16, v{TT}
    v_mul_u32_u24 v{TT+1}, 20, v{TT}
    v_sub_u32 v{TT+1}, v{T0}, v{TT+1}
    v_mul_u32_u24 v{TT+2}, 86, v{TT+1}
    v_lshrrev_b32 v{TT+2}, 8, v{TT+2}
    v_mul_u32_u24 v{TT+3}, 3, v{TT+2}
    v_sub_u32 v{TT+3}, v{TT+1}, v{TT+3}
    v_lshl_add_u32 v{TT}, v{TT+2}, 5, v{TT}
    v_lshlrev_b32 v{TT}, 4, v{TT}
    v_lshl_add_u32 v{TT}, v{TT+3}, 2, v{TT}
    v_mul_u32_u24 v{AA1}, {ACC1_B}, v{T1}
    v_add_u32 v{AA1}, v{AA1}, v{TT}
    s_lshl_b32 s7, s3, 12
    v_add_u32 v13, s7, v{AL16}
    s_mov_b32 s78, 0x07060302
    s_mov_b32 s79, 0x05040100
    s_lshl_b32 s76, s73, 10
    s_add_u32 s76, s76, {SU}
    s_add_u32 s74, s76, {27*1024}
    s_mul_i32 s75, s77, 3072
    s_add_u32 s75, s75, {ACC3}
    s_mov_b32 s40, {3*1280}
    s_mov_b32 s41, {6*1280}
    s_mov_b32 s42, {3*ACC1_B}
    s_mov_b32 s43, {6*ACC1_B}
    v_cmp_gt_u32 s[44:45], 0xac, v0
    """.replace("v_cmp_gt_u32 s[44:45], 0xac, v0", "v_cmp_gt_u32 vcc, 0xac, v0\ns_mov_b64 s[44:45], vcc\nv_cmp_gt_u32 vcc, 0xaa, v0\ns_mov_b64 s[52:53], vcc\nv_or_b32 v14, 12, v12"))
    for k in range(3):
        so = ["0", "s40", "s41"][k]
        a(f"buffer_load_ushort v{XD+k}, v{AO}, s[24:27], {so} offen")
    a("s_waitcnt vmcnt(0)")
    a.vm = []
    stamp("wready")
    WT = RING
    transpose(RAW, WT); transpose(RAW + 16, WT + 16)
    for k in range(3):
        a(f"v_lshlrev_b32 v{XD+k}, 16, v{XD+k}")
    SG, UU = BIG, BIG + 4
    a("s_mov_b32 s79, 0")
    a(f"s_mov_b32 s66, {1 if dry else 0}")
    for j in range(8):
        a(f"v_mov_b32 v{SG+j}, 0")
    if dry:
        a("s_branch L_Dbody")
    a("L_Dwait:")
    stamp(6)
    a(f"""
    s_cmp_lt_u32 s3, s72
    s_cbranch_scc0 L_Dbody
    L_Dpoll:
    {spin()}
    buffer_load_dwordx4 {vr(SG)}, v{AL16}, s[28:31], s76 offen sc1
    buffer_load_dwordx4 {vr(UU)}, v{AL16}, s[28:31], s74 offen sc1
    s_waitcnt vmcnt(0)
    v_max3_u32 v{T0}, v{SG}, v{SG+1}, v{SG+2}
    v_max3_u32 v{T1}, v{SG+3}, v{UU}, v{UU+1}
    v_max3_u32 v{T0}, v{T0}, v{UU+2}, v{UU+3}
    v_max_u32 v{T0}, v{T0}, v{T1}
    v_cmp_eq_u32 vcc, -1, v{T0}
    s_cbranch_vccnz L_Dpoll
    """)
    a("L_Dbody:")
    stamp(7)
    HA = BIG + 8; HB = BIG + 12
    for j in range(4):
        a(f"""
        v_lshlrev_b32 v{TT}, 16, v{SG+j}
        v_and_b32 v{TT+1}, 0xffff0000, v{SG+j}
        v_lshlrev_b32 v{TT+2}, 16, v{UU+j}
        v_and_b32 v{TT+3}, 0xffff0000, v{UU+j}
        v_pk_mul_f32 {vr(TT,2)}, {vr(TT,2)}, {vr(TT+2,2)}
        v_cvt_pk_bf16_f32 v{HA+j}, v{TT}, v{TT+1}
        """)
    for j in range(3):
        a(f"v_mov_b32_dpp v{HB+j}, v{HA+j} row_ror:8 {DPPF}")
    a(f"v_mov_b32_dpp v{HB+3}, v{HA+3} row_ror:8 {DPPF}")
    GD = QB
    for s in range(2):
        for t in range(4):
            c = "0" if s == 0 else vr(GD + 4 * t)
            a(f"v_mfma_f32_16x16x32_bf16 {vr(GD+4*t)}, {vr(HB if s else HA)}, {vr(WT+16*s+4*t)}, {c}")
    a("s_nop 4")
    stamp("b2")
    for t in range(4):
        a(f"ds_write_b128 v13, {vr(GD+4*t)} offset:{L_GP + 1024*t}")
    a("s_waitcnt lgkmcnt(0)\ns_barrier")
    R = RAW
    for k in range(3):
        a(f"ds_read2st64_b32 {vr(R+4*k,2)}, v{AD+k} offset0:{o} offset1:{o+16}")
        a(f"ds_read2st64_b32 {vr(R+4*k+2,2)}, v{AD+k} offset0:{o+32} offset1:{o+48}")
    for k in range(3):
        a(f"s_waitcnt lgkmcnt({4-2*k})")
        a(f"v_add_f32 v{R+4*k}, v{R+4*k}, v{R+4*k+1}\nv_add_f32 v{R+4*k+2}, v{R+4*k+2}, v{R+4*k+3}\nv_add_f32 v{R+4*k}, v{R+4*k}, v{R+4*k+2}")
        a(f"v_cndmask_b32 v{R+4*k+1}, v{R+4*k}, 1.0, s[68:69]")
    stamp("b1")
    a(f"""
    s_cmp_eq_u32 s66, 0
    s_cbranch_scc0 L_Dskip
    buffer_atomic_add_f32 v{R+1}, v{AAT}, s[28:31], s75 offen sc0
    buffer_atomic_add_f32 v{R+5}, v{AAT}, s[28:31], s75 offen offset:1024 sc0
    s_cmp_ge_u32 s3, 3
    s_cbranch_scc1 L_Dno2
    s_mov_b64 exec, s[44:45]
    buffer_atomic_add_f32 v{R+9}, v{AAT}, s[28:31], s75 offen offset:2048 sc0
    s_mov_b64 exec, -1
    L_Dno2:
    {spin()}
    buffer_load_dword v{R+3}, v14, s[28:31], 0 offen sc1
    buffer_load_dword v{R+7}, v14, s[28:31], s42 offen sc1
    buffer_load_dword v{R+11}, v14, s[28:31], s43 offen sc1
    buffer_load_dword v{R+2}, v{AA1}, s[28:31], 0 offen sc1
    buffer_load_dword v{R+6}, v{AA1}, s[28:31], s42 offen sc1
    buffer_load_dword v{R+10}, v{AA1}, s[28:31], s43 offen sc1
    s_waitcnt vmcnt(0)
    v_cndmask_b32 v{R+11}, v{R+7}, v{R+11}, s[52:53]
    v_min3_f32 v{R+3}, v{R+3}, v{R+7}, v{R+11}
    v_cmp_neq_f32 vcc, 0x42000000, v{R+3}
    s_cbranch_vccnz L_Dno2
    L_Dskip:
    """)
    stamp(8)
    for k in range(3):
        r = R + 4 * k
        a(f"""
        v_mov_b32_dpp v{r+3}, v{r+1} quad_perm:[3,3,3,3] {DPPF}
        v_add_f32 v{r}, v{r}, v{r+1}
        v_cvt_pk_bf16_f32 v{r}, v{r+2}, v{r}
        v_lshlrev_b32 v{r+2}, 16, v{r}
        v_and_b32 v{r}, 0xffff0000, v{r}
        v_add_f32 v{r+2}, v{r+2}, v{XD+k}
        v_cvt_pk_bf16_f32 v{r+2}, v{r+2}, v{r+2}
        v_and_b32 v{r+2}, 0xffff0000, v{r+2}
        v_add_f32 v{r}, v{r}, v{r+2}
        v_cvt_pk_bf16_f32 v{r}, v{r}, v{r}
        v_cmp_eq_f32 vcc, 0x40e00000, v{r+3}
        s_andn2_b64 s[{46+2*k}:{47+2*k}], vcc, s[68:69]
        """)
    a(f"""
    s_cmp_eq_u32 s66, 0
    s_mov_b32 s66, 0
    s_cbranch_scc1 L_Dstore
    s_barrier
    s_branch L_Dwait
    L_Dstore:
    s_and_b64 s[50:51], s[50:51], s[52:53]
    """)
    for k in range(3):
        so = ["0", "s40", "s41"][k]
        a(f"""
        s_mov_b64 exec, s[{46+2*k}:{47+2*k}]
        s_cbranch_execz L_Dns{k}
        buffer_store_short v{R+4*k}, v{AO}, s[36:39], {so} offen
        L_Dns{k}:
        """)
    a("s_mov_b64 exec, -1")
    write_stamps()
    a("L_end:")
    a("s_endpgm")

    if stamps: a.L.insert(0, "; stamps " + repr(stamps))
    head = open("sequential_preLN__sliding_block_cached__glu_gated_glu__decode.s.ref").read().split("; Override launch")[0]
    out = head + f"; @launch grid=(256,1,1) block=(256,1,1) lds={LDS_BYTES}\n"
    out += '.amdgcn_target "amdgcn-amd-amdhsa--gfx950"\n.text\n'
    out += f".globl {KN}\n.p2align 8\n.type {KN},@function\n{KN}:\n"
    out += "\n".join(a.L) + "\n"
    out += f""".section .rodata,"a"
.p2align 6
.amdhsa_kernel {KN}
  .amdhsa_next_free_vgpr 512
  .amdhsa_next_free_sgpr 102
  .amdhsa_accum_offset 256
  .amdhsa_group_segment_fixed_size 0
  .amdhsa_kernarg_size 96
  .amdhsa_user_sgpr_count 2
  .amdhsa_user_sgpr_kernarg_segment_ptr 1
  .amdhsa_system_sgpr_workgroup_id_x 1
  .amdhsa_float_denorm_mode_32 3
.end_amdhsa_kernel
"""
    return out

if __name__ == "__main__":
    kw = {}
    for x in sys.argv[2:]:
        k, v = x.split("=")
        kw[k] = eval(v)
    open(sys.argv[1], "w").write(gen(**kw))
```

```python
import sys
from gen import Asm, vr, ar, DPPF, allreduce, rbf, mixseq, KN

ACC1 = 0
ACC1_B = 3584
ACC3 = 28672
FLAGS = 59392
TICK = FLAGS + 4096
SU = 69632
INIT_END = 31 * 4096
QF = 31 * 4096
QX = 40 * 4096
WS_USED = QX + (1 << 20)
STAMP = 4 << 20

L_Q = 0
L_ML = 2048
L_PV = 2304
L_OP = 6400
L_HN = 27904
HN_STR = 1312
L_W = 38400
LDS_BYTES = L_W + 81920

def gen(rot=0, W=7, stamps=False, tailW=7, bound=200000, slp=6, kf='nt', vf='nt', wf='nt', ff='nt', pf='nt',
        hmap='adj', delay=0, nwoK=20, qsig=24, qchk=40, gpre=8, prefetch=True, tickat=61, dryG=False, dryD=False, WIN=7, diag='', per=200, nfirst=8, burst=6, WB=1, rlx=6, qdly=2):
    a = Asm()
    def spin():
        return f"s_add_u32 s100, s100, 1\ns_cmp_gt_u32 s100, {bound}\ns_cbranch_scc1 L_end\n" if bound else ''
    LANE, KOFF, VOFF, QOFF, OOFF = 1, 2, 3, 4, 5
    T0, T1 = 6, 7
    M = 8
    T2 = 15
    BA = [16, 20]
    D = [24, 28]
    QB = 32
    P = 48
    TT = 52
    BIG = 64
    APV, AOP, AAT, AL16, WOFF, TK = 84, 85, 89, 90, 91, 95
    WO = 96
    E = 176
    NV0 = 12; V0 = 208
    if stamps is True:
        stamps = [0, 1, 2, 3, 4, 5, 6, 7, 8, 9]
    def stamp(i):
        if stamps and i in stamps:
            j = stamps.index(i)
            a(f"s_memrealtime s[{80+2*j}:{81+2*j}]")
    HMAP = {'mod': "s_and_b32 s4, s2, 31",
            'adj': "s_and_b32 s4, s2, 7\ns_lshl_b32 s4, s4, 2\ns_bfe_u32 s5, s2, 0x20003\ns_add_u32 s4, s4, s5"}[hmap]

    a("s_cmp_ge_u32 s2, 256\ns_cbranch_scc1 L_end")
    a("s_load_dwordx16 s[40:55], s[0:1], 0")
    a("s_load_dwordx8 s[56:63], s[0:1], 64")
    a("s_mov_b32 s100, 0")
    if stamps:
        for j in range(10): a(f"s_mov_b32 s{80+2*j}, 0")
    stamp(0)
    if delay:
        a("s_memrealtime s[80:81]")
    AX, AH, AX2, AH2 = 92, 13, 93, 94
    a(f"""
    v_lshrrev_b32 v{T0}, 6, v0
    v_bfe_u32 v{T1}, v0, 4, 2
    v_readfirstlane_b32 s3, v{T0}
    v_and_b32 v{TT}, 3, v0
    v_lshl_add_u32 v{TT}, v{T1}, 2, v{TT}
    v_lshlrev_b32 v{TT}, 4, v{TT}
    v_lshl_add_u32 v{TT}, v{T0}, 10, v{TT}
    v_bfe_u32 v{TT+1}, v0, 2, 2
    v_lshl_add_u32 v{KOFF}, v{TT+1}, 8, v{TT}
    {'v_lshlrev_b32 v%d, 4, v0' % KOFF if 'knat' in diag else ''}
    {HMAP}
    s_lshr_b32 s5, s2, 5
    s_lshl_b32 s6, s5, 5
    s_add_u32 s6, s6, s4
    s_lshl_b32 s66, s6, 12
    s_lshl_b32 s6, s6, 20
    s_add_u32 s6, s6, 0xC0000
    s_mov_b32 s10, 0x40000
    s_mov_b32 s11, 0x20000
    s_mov_b32 s26, 10240
    s_mov_b32 s27, 0x20000
    v_lshrrev_b32 v{TT+2}, 5, v0
    v_and_b32 v{TT+3}, 31, v0
    v_mul_u32_u24 v{AX}, 1280, v{TT+2}
    v_lshl_add_u32 v{AX2}, v{TT+3}, 3, v{AX}
    v_lshl_add_u32 v{AX}, v{TT+3}, 4, v{AX}
    v_and_b32 v{T2}, 15, v0
    v_mul_u32_u24 v{TT}, 20, v{T0}
    v_add_u32 v{TT}, v{TT}, v{T1}
    v_lshlrev_b32 v{TT+1}, 4, v{T2}
    v_lshl_add_u32 v{QOFF}, v{TT}, 13, v{TT+1}
    s_mul_i32 s7, s5, {80*8192}
    s_lshl_b32 s65, s4, 8
    s_add_u32 s7, s7, s65
    s_sub_u32 s18, {640*8192}, s7
    s_mov_b32 s19, 0x20000
    s_waitcnt lgkmcnt(0)
    """)
    stamp("karg")
    a(f"""
    s_add_u32 s8, s42, s6
    s_addc_u32 s9, s43, 0
    s_mov_b32 s24, s40
    s_mov_b32 s25, s41
    s_add_u32 s16, s46, s7
    s_addc_u32 s17, s47, 0
    """)
    st = {"k": 0, "v": 0, "early": True}
    XR = E
    WQ = E + 12
    def vreg(i): return vr(V0 + 4 * i) if i < NV0 else ar(4 * (i - NV0))
    def ldK(i):
        a(f"s_mov_b32 s65, {i*4096}")
        a.vmem(f"buffer_load_dwordx4 {ar(4*i)}, v{KOFF}, s[8:11], s65 offen {kf}", ("k", i))
    def ldV(i):
        assert i < NV0 or i - NV0 < st["k"], (i, st)
        assert st["early"] in (False, "q")
        a(f"s_mov_b32 s65, {i*4096}")
        a.vmem(f"buffer_load_dwordx4 {vreg(i)}, v{VOFF}, s[12:15], s65 offen {vf}", ("v", i))
    def ldQ(t):
        a(f"s_mov_b32 s65, {t*32768}")
        a.vmem(f"buffer_load_dwordx4 {vr(WQ+4*t)}, v{QOFF}, s[16:19], s65 offen {wf}", ("q", t))
    def ldO(j):
        assert j < 20 or st["early"] is False
        assert j < 28 or j - 28 < st["v"], (j, st)
        t, G = j // 5, j % 5
        a(f"s_mov_b32 s65, {t*5120}")
        a.vmem(f"buffer_load_dwordx4 {vr(WO+4*j)}, v{OOFF}, s[20:23], s65 offen offset:{G*256} {wf}", ("o", j))
    LD = {"k": ldK, "v": ldV, "q": ldQ, "o": ldO}
    Ks = [("k", i) for i in range(64)]; Vs = [("v", i) for i in range(64)]; Os = [("o", j) for j in range(40)]
    first = []
    for t in range(5): first += [("q", t), ("k", t + 1)]
    full = [("k", 0)] + first + mixseq(Ks[6:], Os[:nwoK], skip=2) + mixseq(Vs, Os[nwoK:], skip=8, upto=60)
    idx = {x: i for i, x in enumerate(full)}
    pos = 0
    relax = [0]
    def issue(n=1, extra=0):
        nonlocal pos
        a.acc = 0
        for _ in range(n):
            if pos < len(full):
                x = full[pos]; pos += 1
                if pos > nfirst + 1:
                    n_ = WIN - 1 + extra
                    if relax[0] and "init" in a.vm:
                        n_ = max(n_, min(len(a.vm) - a.vm.index("init"), WIN + relax[0]))
                    a.window(n_)
                LD[x[0]](x[1])
                stamp(f"i{pos}")
    issue()
    def ldx(XR, tag):
        a.vmem(f"buffer_load_dwordx4 {vr(XR)}, v{AX}, s[24:27], 0 offen", tag)
        a.vmem(f"buffer_load_dwordx4 {vr(XR+4)}, v{AX}, s[24:27], 0 offen offset:512", tag)
        a.vmem(f"buffer_load_dwordx2 {vr(XR+8, 2)}, v{AX2}, s[24:27], 0 offen offset:1024", tag)
    ldx(XR, "x")
    issue(nfirst)
    a(f"""
    s_add_u32 s12, s44, s6
    s_addc_u32 s13, s45, 0
    s_mov_b32 s14, 0x40000
    s_mov_b32 s15, 0x20000
    s_mul_i32 s7, s4, 163840
    s_add_u32 s20, s48, s7
    s_addc_u32 s21, s49, 0
    s_mov_b32 s22, 163840
    s_mov_b32 s23, 0x20000
    s_mov_b32 s28, s62
    s_mov_b32 s29, s63
    s_mov_b32 s30, {WS_USED}
    s_mov_b32 s31, 0x20000
    s_mov_b32 s36, s58
    s_mov_b32 s37, s59
    s_mov_b32 s38, 10240
    s_mov_b32 s39, 0x20000
    v_and_b32 v{LANE}, 63, v0
    v_lshlrev_b32 v{VOFF}, 4, v0
    v_lshlrev_b32 v{AL16}, 4, v{LANE}
    v_lshlrev_b32 v{AAT}, 2, v0
    v_lshl_add_u32 v{TT+2}, v{T0}, 5, v{T1}
    v_mul_u32_u24 v{TT+2}, 1280, v{TT+2}
    v_add_u32 v{OOFF}, v{TT+2}, v{TT+1}
    v_lshrrev_b32 v{TT+2}, 5, v0
    v_lshl_add_u32 v{AH}, v{TT+2}, 5, v{AX}
    v_lshl_add_u32 v{AH2}, v{TT+2}, 5, v{AX2}
    v_bfe_u32 v{TT+2}, v0, 3, 1
    v_mul_u32_u24 v{TT+2}, {HN_STR}, v{TT+2}
    s_mul_i32 s7, s5, 80
    v_add_u32 v{TT}, s7, v{TT}
    v_lshl_add_u32 v14, v{TT}, 1, v{TT+2}
    """)
    a(f"""
    v_and_b32 v{TT}, 1, v0
    v_lshlrev_b32 v{TT}, 4, v{TT}
    v_mov_b32 v{TT+1}, 0xffff
    v_lshlrev_b32 v{TT}, v{TT}, v{TT+1}
    v_bfe_u32 v{TT+1}, v0, 1, 2
    """)
    for r in range(4):
        a(f"v_cmp_eq_u32 vcc, {r}, v{TT+1}\ns_nop 1\nv_cndmask_b32 v{M+r}, 0, v{TT}, vcc")

    def ln_rows(H, HP, hook=lambda: None):
        a(f"v_add_f32 v{TT}, v{TT}, v{TT+1}")
        allreduce(a, "v_add_f32", TT, TT + 1, rows=2)
        a(f"v_mul_f32 v{TT}, 0xbacccccd, v{TT}")
        rbf(a, TT + 2, TT)
        hook()
        for i in range(10):
            a(f"v_pk_add_f32 {vr(TT+4,2)}, {vr(H+2*i,2)}, {vr(TT,2)} op_sel_hi:[1,0]")
            if i == 0:
                a(f"v_pk_mul_f32 {vr(TT+6,2)}, {vr(TT+4,2)}, {vr(TT+4,2)}")
            else:
                a(f"v_pk_fma_f32 {vr(TT+6,2)}, {vr(TT+4,2)}, {vr(TT+4,2)}, {vr(TT+6,2)}")
        a(f"v_add_f32 v{TT+6}, v{TT+6}, v{TT+7}")
        steps = ["quad_perm:[1,0,3,2]", "quad_perm:[2,3,0,1]", "row_half_mirror", "row_mirror"]
        V_ = TT + 6
        for i in range(10):
            a(f"v_pk_add_f32 {vr(H+2*i,2)}, {vr(H+2*i,2)}, {vr(TT+2,2)} op_sel_hi:[1,0]")
            a(f"v_cvt_pk_bf16_f32 v{T0}, v{H+2*i}, v{H+2*i+1}")
            a(f"v_lshlrev_b32 v{H+2*i}, 16, v{T0}\nv_and_b32 v{H+2*i+1}, 0xffff0000, v{T0}")
            if i < 4:
                a(f"v_add_f32_dpp v{V_}, v{V_}, v{V_} {steps[i]} {DPPF}")
                if i == 3:
                    a(f"v_mov_b32 v{V_+1}, v{V_}")
            elif i == 4:
                a(f"v_permlane16_swap_b32 v{V_}, v{V_+1}")
            elif i == 5:
                a(f"v_add_f32 v{V_}, v{V_}, v{V_+1}\nv_mul_f32 v{V_}, 0x3acccccd, v{V_}")
                rbf(a, V_, V_)
                a(f"v_add_f32 v{V_}, 0x3727c5ac, v{V_}")
                rbf(a, V_, V_)
                a(f"v_sqrt_f32 v{V_}, v{V_}")
            elif i == 6:
                rbf(a, V_, V_)
                a(f"v_rcp_f32 v{V_}, v{V_}")
        hook()
        stamp("b1")
        for i in range(10):
            a(f"v_pk_mul_f32 {vr(H+2*i,2)}, {vr(H+2*i,2)}, {vr(TT+6,2)} op_sel_hi:[1,0]")
            a(f"v_cvt_pk_bf16_f32 v{HP+i}, v{H+2*i}, v{H+2*i+1}")
            if i in (3, 7):
                a(f"ds_write_b128 v{AH}, {vr(HP+i-3)} offset:{L_HN + 128*(i-3)}")
            if i == 9:
                a(f"ds_write_b64 v{AH2}, {vr(HP+8,2)} offset:{L_HN + 1024}")

    a.need("x")
    stamp("xarr")
    issue(2)
    assert pos > idx[("q", 4)]
    a(f"""
    s_add_u32 s7, s2, 31
    s_sub_u32 s64, s2, 8
    s_cmp_lt_u32 s2, 8
    s_cselect_b32 s7, s7, s64
    s_lshl_b32 s7, s7, 12
    s_cmp_lt_u32 s2, 39
    s_cselect_b32 s7, s7, 0x7000000
    s_cmp_lt_u32 s2, 25
    s_cselect_b32 s64, 0, -1
    v_mov_b32 v{BIG}, s64
    v_mov_b32 v{BIG+1}, s64
    v_mov_b32 v{BIG+2}, s64
    v_mov_b32 v{BIG+3}, s64
    v_add_u32 v{BIG+4}, s7, v{VOFF}
    """)
    if 'noinit' not in diag:
        a.vmem(f"buffer_store_dwordx4 {vr(BIG)}, v{BIG+4}, s[28:31], 0 offen sc1", "init")
    relax[0] = rlx
    issue(burst - 2)
    a.auto = (per, issue)
    H = E + 32
    for i in range(10):
        a(f"v_lshlrev_b32 v{H+2*i}, 16, v{XR+i}\nv_and_b32 v{H+2*i+1}, 0xffff0000, v{XR+i}")
        if i == 1:
            a(f"v_pk_add_f32 {vr(TT,2)}, {vr(H,2)}, {vr(H+2,2)}")
        elif i > 1:
            a(f"v_pk_add_f32 {vr(TT,2)}, {vr(TT,2)}, {vr(H+2*i,2)}")
    ln_rows(H, XR)
    issue(1, WB)
    a("s_waitcnt lgkmcnt(0)\ns_barrier")
    XP = H
    for t in range(5):
        for p in range(4):
            a(f"ds_read_u16 v{XP+4*t+p}, v14 offset:{L_HN + 2*p*HN_STR + 8*t}")
        if t == 2:
            a("s_waitcnt lgkmcnt(0)")
    a("s_waitcnt lgkmcnt(0)")
    DQ = E + 52
    n = 0
    for t in range(5):
        a.need(("q", t))
        for p in range(4):
            B = BA[n & 1]; n += 1
            x = XP + 4 * t + p
            a(f"v_lshl_or_b32 v{x}, v{x}, 16, v{x}")
            for r in range(4):
                a(f"v_and_b32 v{B+r}, v{x}, v{M+r}")
            a("s_nop 1")
            c = "0" if t == 0 else vr(DQ + 4 * p)
            a(f"v_mfma_f32_16x16x32_bf16 {vr(DQ+4*p)}, {vr(WQ+4*t)}, {vr(B)}, {c}")
    a(f"""
    s_lshl_b32 s7, s3, 12
    v_add_u32 v{TT}, s7, v{AL16}
    v_bfe_u32 v{TT+1}, v0, 3, 1
    s_lshl_b32 s7, s3, 1
    v_add_u32 v{TT+1}, s7, v{TT+1}
    v_lshlrev_b32 v{TT+1}, 17, v{TT+1}
    v_and_b32 v{TT+2}, 7, v0
    v_lshl_add_u32 v{TT+2}, v{T1}, 3, v{TT+2}
    v_lshl_add_u32 v{TT+1}, v{TT+2}, 4, v{TT+1}
    s_lshl_b32 s7, s4, 12
    s_lshl_b32 s67, s5, 9
    s_add_u32 s67, s67, s7
    s_add_u32 s67, s67, {QX}
    """)
    for p in range(4):
        a(f"ds_write_b128 v{TT}, {vr(DQ+4*p)} offset:{L_OP + 1024*p}")
    issue(1, WB)
    a.need("init")
    a("s_waitcnt lgkmcnt(0)\ns_barrier")
    for w in range(4):
        a(f"ds_read_b128 {vr(H+4*w)}, v{VOFF} offset:{L_OP + 4096*w}")
    a(f"""
    s_getreg_b32 s77, hwreg(HW_REG_XCC_ID, 0, 4)
    s_add_u32 s77, s77, 1
    s_and_b32 s78, s2, 7
    s_lshl_b32 s78, s78, 2
    s_cmp_lt_u32 s2, 8
    s_cselect_b32 s76, s77, 1
    s_cselect_b32 s7, s78, 128
    s_cmp_lt_u32 s2, 39
    s_cselect_b32 s64, s3, 1
    s_waitcnt lgkmcnt(0)
    s_cmp_eq_u32 s64, 0
    s_cbranch_scc0 L_nosig
    s_atomic_add s76, s[60:61], s7
    L_nosig:
    """)
    for hf in (0, 2):
        a(f"v_pk_add_f32 {vr(H+hf,2)}, {vr(H+hf,2)}, {vr(H+4+hf,2)}")
        a(f"v_pk_add_f32 {vr(H+8+hf,2)}, {vr(H+8+hf,2)}, {vr(H+12+hf,2)}")
        a(f"v_pk_add_f32 {vr(H+hf,2)}, {vr(H+hf,2)}, {vr(H+8+hf,2)}")
    QA = BIG + 8
    a(f"v_mov_b32 v{QA}, v{TT+1}")
    if 'noqst' not in diag:
        a.vmem(f"buffer_store_dwordx4 {vr(H)}, v{QA}, s[28:31], s67 offen", "qst")
    stamp("qst")
    def stream_to(tag):
        while pos <= idx[tag]:
            issue()
    issue(WIN + qdly - 3, 1)
    a.auto = None
    a("s_load_dword s79, s[60:61], s78")
    issue(3, 1)
    a.need("qst")
    a(f"""
    s_lshl_b32 s75, s78, 10
    s_add_u32 s75, s75, {QF}
    s_lshr_b32 s7, s2, 3
    s_lshl_b32 s74, s7, 7
    s_add_u32 s74, s74, s75
    s_and_b32 s7, s7, 3
    s_lshl_b32 s7, s7, 7
    s_add_u32 s75, s75, s7
    v_mov_b32 v{TT+1}, 1
    v_and_b32 v{TT}, 7, v0
    v_lshlrev_b32 v{TT}, 9, v{TT}
    s_mov_b32 s64, 0
    s_waitcnt lgkmcnt(0)
    s_cmp_eq_u32 s79, s77
    s_cbranch_scc0 L_lslow
    L_lok:
    s_barrier
    s_cmp_eq_u32 s3, 0
    s_cbranch_scc0 L_noqf
    s_mov_b64 exec, 1
    buffer_store_dword v{TT+1}, off, s[28:31], s74
    s_mov_b64 exec, -1
    L_noqf:
    """)
    slow = f"""
    L_lslow:
    s_cmp_lg_u32 s79, 0
    s_cbranch_scc1 L_lseen
    {spin()}
    v_mov_b32 v{TT+2}, s78
    global_load_dword v{TT+2}, v{TT+2}, s[60:61] sc1
    s_waitcnt vmcnt(0)
    v_readfirstlane_b32 s79, v{TT+2}
    s_nop 3
    s_branch L_lslow
    L_lseen:
    s_cmp_eq_u32 s79, s77
    s_cbranch_scc1 L_lok
    s_mov_b32 s64, 1
    buffer_store_dwordx4 {vr(H)}, v{QA}, s[28:31], s67 offen sc1
    s_waitcnt vmcnt(0)
    s_barrier
    s_cmp_eq_u32 s3, 0
    s_cbranch_scc0 L_noqf
    s_mov_b64 exec, 1
    buffer_store_dword v{TT+1}, off, s[28:31], s74 sc1
    s_mov_b64 exec, -1
    s_branch L_noqf
    """
    stamp("qsig")
    a.auto = (per, issue)
    a(f"""
    v_and_b32 v{TT+4}, 1, v0
    v_lshl_add_u32 v{TT+4}, v{TT+4}, 2, v{T1}
    s_lshl_b32 s7, s3, 4
    v_add_u32 v{TT+4}, s7, v{TT+4}
    v_bfe_u32 v{TT+5}, v0, 1, 2
    v_lshlrev_b32 v{TT+5}, 2, v{TT+5}
    v_lshl_add_u32 v{APV}, v{TT+4}, 4, v{TT+5}
    v_bfe_u32 v{TT+4}, v0, 2, 5
    v_lshrrev_b32 v{TT+5}, 7, v0
    v_mul_u32_u24 v{TT+5}, 3, v{TT+5}
    v_and_b32 v{TT+6}, 3, v0
    v_add_u32 v{TT+8}, v{TT+5}, v{TT+6}
    """)
    for k in range(4):
        a(f"""
        v_add_u32 v{TT+5}, {6*k}, v{TT+8}
        v_lshrrev_b32 v{TT+6}, 4, v{TT+5}
        v_sub_u32 v{TT+6}, 3, v{TT+6}
        v_lshlrev_b32 v{TT+6}, v{TT+6}, v{TT+4}
        v_lshrrev_b32 v{TT+7}, 3, v{TT+5}
        v_min_u32 v{TT+7}, 2, v{TT+7}
        v_lshl_add_u32 v{TT+6}, v{TT+7}, 8, v{TT+6}
        v_and_b32 v{TT+5}, 7, v{TT+5}
        v_add_u32 v{TT+5}, v{TT+5}, v{TT+6}
        v_lshrrev_b32 v{TT+6}, 5, v{TT+5}
        v_lshlrev_b32 v{TT+6}, 8, v{TT+6}
        v_and_b32 v{TT+7}, 7, v{TT+5}
        v_lshl_add_u32 v{TT+6}, v{TT+7}, 4, v{TT+6}
        v_bfe_u32 v{TT+7}, v{TT+5}, 3, 2
        v_lshl_add_u32 v{AOP+k}, v{TT+7}, 2, v{TT+6}
        """)
    stream_to(("k", qchk))
    a.auto = None
    a.vmem(f"buffer_load_dword v{TT+2}, v{TT}, s[28:31], s75 offen sc1", "qchk")
    issue(WIN, 1)
    a.need("qchk")
    a(f"""
    s_add_u32 s66, s66, {QX}
    v_cmp_eq_u32 vcc, 0, v{TT+2}
    s_cbranch_vccnz L_qslow
    L_qok:
    """)
    slow += f"""
    L_qslow:
    s_cmp_lg_u32 s64, 0
    s_cbranch_scc1 L_qok
    {spin()}
    buffer_load_dword v{TT+2}, v{TT}, s[28:31], s75 offen sc1
    s_waitcnt vmcnt(0)
    v_cmp_eq_u32 vcc, 0, v{TT+2}
    s_cbranch_vccnz L_qslow
    s_branch L_qok
    """
    stamp("qchk")
    QG = BIG
    if 'noqg' not in diag:
        a.vmem(f"buffer_load_dwordx4 {vr(QG)}, v{VOFF}, s[28:31], s66 offen sc1", "qg")
    a(f"""
    v_bfe_u32 v{TT+2}, v0, 3, 2
    v_and_b32 v{TT+3}, 7, v0
    v_lshl_add_u32 v{TT+2}, v{TT+2}, 5, v{TT+3}
    s_lshl_b32 s7, s3, 9
    v_lshl_add_u32 v{TT+2}, v{TT+2}, 2, s7
    v_and_b32 v{TT+3}, 3, v0
    v_lshl_add_u32 v{TT+3}, v{T1}, 2, v{TT+3}
    v_lshlrev_b32 v{TT+3}, 5, v{TT+3}
    """)
    st["early"] = "q"
    issue(WIN, 1)
    a.need("qg")
    a.auto = (per, issue)
    for r in range(4):
        a(f"v_mov_b32 v{QG+4+r}, v{QG+r}")
    for r in range(4):
        a(f"v_permlane32_swap_b32 v{QG+r}, v{QG+4+r}")
    for r in range(4):
        a(f"v_add_f32 v{QG+r}, v{QG+r}, v{QG+4+r}")
    a("s_cmp_lg_u32 s64, 0\ns_cbranch_scc1 L_qlocal\nL_qjoin:")
    slow += f"""
    L_qlocal:
    s_lshl_b32 s7, s4, 8
    s_add_u32 s32, s46, s7
    s_addc_u32 s33, s47, 0
    s_sub_u32 s34, {640*8192}, s7
    s_mov_b32 s35, 0x20000
    s_mul_i32 s7, s3, 160
    v_add_u32 v{TT+4}, s7, v{T1}
    v_and_b32 v{TT+5}, 15, v0
    v_lshlrev_b32 v{TT+5}, 4, v{TT+5}
    v_lshl_add_u32 v{TT+5}, v{TT+4}, 13, v{TT+5}
    s_mul_i32 s7, s5, {HN_STR}
    v_lshl_add_u32 v{TT+4}, v{TT+4}, 1, s7
    v_and_b32 v{TT+2}, 7, v0
    v_lshl_add_u32 v{TT+2}, v{T1}, 5, v{TT+2}
    s_lshl_b32 s7, s3, 9
    v_lshl_add_u32 v{TT+2}, v{TT+2}, 2, s7
    v_mov_b32 v{QG}, 0
    v_mov_b32 v{QG+1}, 0
    v_mov_b32 v{QG+2}, 0
    v_mov_b32 v{QG+3}, 0
    s_mov_b32 s7, 0
    L_qloop:
    buffer_load_dwordx4 {vr(QG+4)}, v{TT+5}, s[32:35], s7 offen
    ds_read_u16 v{TT+6}, v{TT+4} offset:{L_HN}
    s_add_u32 s7, s7, 32768
    s_waitcnt lgkmcnt(0)
    v_add_u32 v{TT+4}, 8, v{TT+4}
    v_lshl_or_b32 v{TT+6}, v{TT+6}, 16, v{TT+6}
    v_and_b32 v{BA[0]}, v{TT+6}, v{M}
    v_and_b32 v{BA[0]+1}, v{TT+6}, v{M+1}
    v_and_b32 v{BA[0]+2}, v{TT+6}, v{M+2}
    v_and_b32 v{BA[0]+3}, v{TT+6}, v{M+3}
    s_cmp_lt_u32 s7, {40*32768}
    s_waitcnt vmcnt(0)
    v_mfma_f32_16x16x32_bf16 {vr(QG)}, {vr(QG+4)}, {vr(BA[0])}, {vr(QG)}
    s_cbranch_scc1 L_qloop
    s_nop 7
    s_branch L_qjoin
    """
    for r in range(4):
        a(f"ds_write_b32 v{TT+2}, v{QG+r} offset:{L_Q + r*32}")
    issue(1, WB)
    a("s_waitcnt lgkmcnt(0)\ns_barrier")
    QP = E
    for w in range(4):
        for hf in range(2):
            a(f"ds_read_b128 {vr(QP+8*w+4*hf)}, v{TT+3} offset:{L_Q + w*512 + hf*16}")
    a("s_waitcnt lgkmcnt(0)")
    for j in range(0, 8, 2):
        a(f"v_pk_add_f32 {vr(QP+j,2)}, {vr(QP+j,2)}, {vr(QP+8+j,2)}\nv_pk_add_f32 {vr(QP+16+j,2)}, {vr(QP+16+j,2)}, {vr(QP+24+j,2)}\nv_pk_add_f32 {vr(QP+j,2)}, {vr(QP+j,2)}, {vr(QP+16+j,2)}")
    for j in range(4):
        a(f"v_cvt_pk_bf16_f32 v{QP+j}, v{QP+2*j}, v{QP+2*j+1}")
    for t in range(4):
        m = 0x000F000F << (4 * t)
        a(f"s_mov_b32 s68, {m:#x}\ns_mov_b32 s69, {m:#x}")
        for j in range(4):
            a(f"v_cndmask_b32 v{QB+4*t+j}, 0, v{QP+j}, s[68:69]")
    for s in range(1, 4):
        m = 0x11111111 << s
        a(f"s_mov_b32 s{68+2*s}, {m:#x}\ns_mov_b32 s{69+2*s}, {m:#x}")
    st["early"] = False
    stamp(1)
    def post(u):
        Dd = D[u & 1]; dst = P + (u >> 2) if (u & 3) == 0 else TT
        a(f"v_mov_b32_dpp v{TT}, v{Dd} quad_perm:[0,0,0,0] {DPPF}")
        a(f"v_add_f32_dpp v{TT}, v{Dd+1}, v{TT} quad_perm:[1,1,1,1] {DPPF}")
        a(f"v_add_f32_dpp v{TT}, v{Dd+2}, v{TT} quad_perm:[2,2,2,2] {DPPF}")
        a(f"v_add_f32_dpp v{dst}, v{Dd+3}, v{TT} quad_perm:[3,3,3,3] {DPPF}")
        if u & 3:
            s = u & 3
            a(f"v_cndmask_b32 v{P+(u>>2)}, v{P+(u>>2)}, v{TT}, s[{68+2*s}:{69+2*s}]")
        else:
            a("s_nop 0")
    for u in range(16):
        while idx[("k", 4 * u + 3)] > pos - WIN:
            issue()
        a.need(("k", 4 * u + 3))
        for t in range(4):
            c = "0" if t == 0 else vr(D[u & 1])
            a(f"v_mfma_f32_16x16x32_bf16 {vr(D[u&1])}, {ar(16*u+4*t)}, {vr(QB+4*t)}, {c}")
        st["k"] = 4 * u + 4
        if u == 0:
            a("s_nop 4")
        else:
            post(u - 1)
    a("s_nop 3")
    post(15)
    S = TT + 2
    for i in range(2):
        a(f"v_cvt_pk_bf16_f32 v{TT}, v{P+2*i}, v{P+2*i+1}")
        a(f"v_lshlrev_b32 v{S+2*i}, 16, v{TT}\nv_and_b32 v{S+2*i+1}, 0xffff0000, v{TT}")
        a(f"v_mul_f32 v{S+2*i}, 0x3db504f3, v{S+2*i}\nv_mul_f32 v{S+2*i+1}, 0x3db504f3, v{S+2*i+1}")
        a(f"v_cvt_pk_bf16_f32 v{TT}, v{S+2*i}, v{S+2*i+1}")
        a(f"v_lshlrev_b32 v{S+2*i}, 16, v{TT}\nv_and_b32 v{S+2*i+1}, 0xffff0000, v{TT}")
    MX, LS = TT + 6, TT + 7
    a(f"v_max_f32 v{MX}, v{S}, v{S+1}\nv_max3_f32 v{MX}, v{MX}, v{S+2}, v{S+3}")
    allreduce(a, "v_max_f32", MX, TT)
    for i in range(4):
        a(f"v_sub_f32 v{P+i}, v{S+i}, v{MX}\nv_mul_f32 v{P+i}, 0x3fb8aa3b, v{P+i}\nv_exp_f32 v{P+i}, v{P+i}")
    a(f"s_nop 0\nv_add_f32 v{LS}, v{P}, v{P+1}\nv_add_f32 v{TT}, v{P+2}, v{P+3}\nv_add_f32 v{LS}, v{LS}, v{TT}")
    allreduce(a, "v_add_f32", LS, TT)
    a(f"s_lshl_b32 s7, s3, 3\nv_mov_b32 v{TT}, s7\nds_write_b64 v{TT}, v[{MX}:{LS}] offset:{L_ML}")
    issue(1, WB)
    a(f"s_waitcnt lgkmcnt(0)\ns_barrier\nv_mov_b32 v{TT}, 0")
    ML = BIG
    a(f"ds_read_b128 {vr(ML)}, v{TT} offset:{L_ML}\nds_read_b128 {vr(ML+4)}, v{TT} offset:{L_ML+16}")
    a("s_waitcnt lgkmcnt(0)")
    a(f"v_max_f32 v{MX}, v{ML}, v{ML+2}\nv_max3_f32 v{MX}, v{MX}, v{ML+4}, v{ML+6}")
    for w in range(4):
        a(f"v_sub_f32 v{ML+2*w}, v{ML+2*w}, v{MX}\nv_mul_f32 v{ML+2*w}, 0x3fb8aa3b, v{ML+2*w}\nv_exp_f32 v{ML+2*w}, v{ML+2*w}")
    for i in range(4):
        a(f"v_sub_f32 v{P+i}, v{S+i}, v{MX}\nv_mul_f32 v{P+i}, 0x3fb8aa3b, v{P+i}\nv_exp_f32 v{P+i}, v{P+i}")
    a(f"v_mul_f32 v{LS}, v{ML}, v{ML+1}")
    for w in range(1, 4):
        a(f"v_fmac_f32 v{LS}, v{ML+2*w}, v{ML+2*w+1}")
    a(f"v_rcp_f32 v{LS}, v{LS}\ns_nop 0")
    for i in range(4):
        a(f"v_mul_f32 v{P+i}, v{P+i}, v{LS}")
    for i in range(4):
        a(f"v_cvt_pk_bf16_f32 v{P+i}, v{P+i}, v{P+i}")
    stamp(2)
    a.auto = None
    a(f"""
    s_and_b32 s70, s2, 7
    s_lshr_b32 s71, s2, 3
    s_min_u32 s72, s70, 3
    s_mul_i32 s73, s70, 3
    s_add_u32 s73, s73, s72
    s_cmp_lt_u32 s70, 3
    s_cselect_b32 s72, 4, 3
    s_lshl_b32 s74, s70, 8
    s_add_u32 s74, s74, {TICK}
    s_mul_i32 s67, s5, {ACC1_B}
    s_mov_b32 s76, 1
    s_mov_b32 s68, 0x88888888
    s_mov_b32 s69, 0x88888888
    s_lshl_b32 s7, s3, 10
    v_add_u32 v12, s7, v{AL16}
    s_mul_i32 s7, s3, 5120
    v_add_u32 v{T2}, s7, v{AL16}
    """)

    def selB(dst, src, lane):
        for r in range(4):
            a(f"v_and_b32_dpp v{dst+r}, v{src}, v{M+r} row_newbcast:{lane} {DPPF}")
    def usePV(i):
        B = BA[i & 1]; u, t = i >> 2, i & 3
        selB(B, P + (u >> 2), 4 * t + (u & 3))
        n0 = len(a.L)
        a.need(("v", i))
        stamp(f"v{i}")
        a("s_nop 1" if len(a.L) == n0 else "s_nop 0")
        c = "0" if i == 0 else vr(D[0])
        a(f"v_mfma_f32_16x16x32_bf16 {vr(D[0])}, {vreg(i)}, {vr(B)}, {c}")
        st["v"] = i + 1
    vdone = 0
    while pos < len(full):
        n = 0
        while vdone < 64 - tailW and idx[("v", vdone)] <= pos - W and n < 3:
            usePV(vdone); vdone += 1; n += 1
        x = full[pos]
        issue()
        if x == ("v", 36) and 'noichk' not in diag:
            a("s_load_dword s79, s[60:61], 0x80")
        if x == ("v", 42) and 'noichk' not in diag:
            a(f"""
            L_ichk:
            s_waitcnt lgkmcnt(0)
            s_cmp_eq_u32 s79, 31
            s_cbranch_scc0 L_islow
            """)
            slow += f"""
            L_islow:
            {spin()}
            v_mov_b32 v{TT}, 0x80
            global_load_dword v{TT}, v{TT}, s[60:61] sc1
            s_waitcnt vmcnt(0)
            v_readfirstlane_b32 s79, v{TT}
            s_nop 3
            s_branch L_ichk
            """
    while vdone < 64 - tailW:
        usePV(vdone); vdone += 1
    stamp(3)
    a(f"""
    s_lshl_b32 s7, s72, 1
    s_cmp_lt_u32 s71, s7
    s_cbranch_scc1 L_roleG
    s_sub_u32 s77, s71, 8
    s_cmp_lt_u32 s77, 10
    s_cbranch_scc1 L_roleD
    """)
    vm0 = list(a.vm)

    def att_tail(name, pre, mid=()):
        a.vm = list(vm0)
        pre = list(pre); mid = list(mid)
        if 'nopre' in diag: mid = pre + mid; pre = []
        per = (len(pre) + tailW - 2) // (tailW - 1)
        for i in range(64 - tailW, 64):
            usePV(i)
            if i == tickat and 'notick' not in diag:
                a(f"""
                s_cmp_eq_u32 s3, 0
                s_cbranch_scc0 L_tk{name}
                s_atomic_add s76, s[62:63], s74 glc
                L_tk{name}:
                """)
            if i < 63:
                for _ in range(per):
                    if pre: pre.pop(0)()
        assert not pre
        for j in range(40):
            assert ("o", j) not in a.vm
        stamp("pvlast")
        a("s_nop 7")
        lw = "lgkmcnt(1)"
        a(f"ds_write_b128 v12, {vr(D[0])} offset:{L_PV}")
        a(f"ds_read_b32 v{TK}, v{APV}")
        a(f"s_waitcnt {lw}\ns_barrier")
        assert L_PV % 256 == 0
        o = L_PV // 256
        a(f"ds_read2st64_b32 v[{BA[0]}:{BA[0]+1}], v{APV} offset0:{o} offset1:{o+4}")
        a(f"ds_read2st64_b32 v[{BA[0]+2}:{BA[0]+3}], v{APV} offset0:{o+8} offset1:{o+12}")
        a(f"ds_read_b32 v{TK}, v{APV}")
        a(f"s_waitcnt {lw}")
        stamp(4)
        if 'attonly' in diag:
            write_stamps(); a("s_endpgm")
        a(f"""
        v_pk_add_f32 {vr(BA[0],2)}, {vr(BA[0],2)}, {vr(BA[0]+2,2)}
        v_add_f32 v{BA[0]}, v{BA[0]}, v{BA[0]+1}
        v_cvt_pk_bf16_f32 v{T0}, v{BA[0]}, v{BA[0]}
        s_nop 1
        """)
        OB = QB; OD = BIG
        selB(OB, T0, 0)
        order = [(t, G) for t in range(6) for G in range(5)] + [(t, G) for G in range(5) for t in (6, 7)]
        pend = [(t, r) for t in range(1, 8) for r in range(4)]
        for _ in range(2):
            tt, r = pend.pop(0)
            a(f"v_and_b32_dpp v{OB+4*tt+r}, v{T0}, v{M+r} row_newbcast:{tt} {DPPF}")
        for n, (t, G) in enumerate(order):
            c = "0" if t == 0 else vr(OD + 4 * G)
            a(f"v_mfma_f32_16x16x32_bf16 {vr(OD+4*G)}, {vr(WO+4*(5*t+G))}, {vr(OB+4*t)}, {c}")
            if pend:
                tt, r = pend.pop(0)
                assert tt > t + 1 or n % 5 < 3
                a(f"v_and_b32_dpp v{OB+4*tt+r}, v{T0}, v{M+r} row_newbcast:{tt} {DPPF}")
            if mid and n % 3 == 1:
                mid.pop(0)()
        assert not pend
        stamp("omfma")
        for G in range(5):
            a(f"ds_write_b128 v{T2}, {vr(OD+4*G)} offset:{L_OP+1024*G}")
            if G < 4: a("s_nop 0")
        a(f"""
        s_lshl_b32 s7, s70, 2
        s_add_u32 s7, s7, {FLAGS}
        s_waitcnt lgkmcnt(0)
        s_cmp_eq_u32 s76, 31
        s_cbranch_scc0 L_noflag{name}
        v_lshlrev_b32 v{T0}, 8, v{LANE}
        v_mov_b32 v{TK}, 1
        s_mov_b64 exec, 0xffff
        buffer_store_dword v{TK}, v{T0}, s[28:31], s7 offen sc1
        s_mov_b64 exec, -1
        L_noflag{name}:
        s_barrier
        """)
        o = L_OP // 256
        R = QB
        for k in range(4):
            a(f"ds_read2st64_b32 v[{R+4*k}:{R+4*k+1}], v{AOP+k} offset0:{o} offset1:{o+20}")
            a(f"ds_read2st64_b32 v[{R+4*k+2}:{R+4*k+3}], v{AOP+k} offset0:{o+40} offset1:{o+60}")
        for k in range(4):
            if k == 3:
                a(f"s_cmp_ge_u32 s3, 2\ns_cbranch_scc1 L_no3{name}")
            a(f"s_waitcnt lgkmcnt({6-2*k})")
            a(f"v_pk_add_f32 {vr(R+4*k,2)}, {vr(R+4*k,2)}, {vr(R+4*k+2,2)}\nv_add_f32 v{R+4*k}, v{R+4*k}, v{R+4*k+1}")
            a(f"v_cndmask_b32 v{R+4*k}, v{R+4*k}, 1.0, s[68:69]")
            a(f"buffer_atomic_add_f32 v{R+4*k}, v{AAT}, s[28:31], s67 offen offset:{ACC1 + k*1024}")
        a(f"L_no3{name}:")
        a("s_waitcnt lgkmcnt(0)")
        stamp(5)
        for f in mid: f()

    def transpose(src, dst):
        for t in range(4):
            for p in range(4):
                sel = "s78" if t & 1 else "s79"
                a(f"v_perm_b32 v{dst+4*t+p}, v{src+2*(2*p+1)+(t>>1)}, v{src+2*(2*p)+(t>>1)}, {sel}")

    dl = [0]
    def write_stamps():
        if delay:
            dl[0] += 1
            a(f"L_dl{dl[0]}:\ns_memrealtime s[82:83]\ns_waitcnt lgkmcnt(0)\ns_sub_u32 s82, s82, s80\ns_cmp_lt_u32 s82, {delay}\ns_cbranch_scc1 L_dl{dl[0]}")
        if stamps:
            a("s_waitcnt vmcnt(0)")
            stamp(9)
            a("s_waitcnt lgkmcnt(0)")
            for i in range(10):
                a(f"v_mov_b32 v{BIG+i}, s{80+2*i}")
            a(f"s_getreg_b32 s7, hwreg(HW_REG_XCC_ID)\nv_mov_b32 v{BIG+10}, s7\nv_mov_b32 v{BIG+11}, s79")
            a(f"s_lshl_b32 s7, s2, 2\ns_add_u32 s7, s7, s3\ns_lshl_b32 s7, s7, 6\ns_add_u32 s7, s7, {STAMP}\nv_mov_b32 v{T0}, s7")
            for i in range(3):
                a(f"global_store_dwordx4 v{T0}, {vr(BIG+4*i)}, s[62:63] offset:{16*i}")

    def hint_wait(name):
        a(f"""
        s_cmp_eq_u32 s3, 0
        s_cbranch_scc0 L_{name}bar
        L_{name}poll:
        {spin()}
        buffer_load_dword v{T1}, v14, s[28:31], s75 offen sc1
        s_waitcnt vmcnt(0)
        v_cmp_eq_u32 vcc, 0, v{T1}
        s_cbranch_vccnz L_{name}poll
        L_{name}bar:
        s_barrier
        """)
    hint_setup = f"""
    v_and_b32 v14, 7, v0
    v_lshlrev_b32 v14, 2, v14
    s_and_b32 s75, s2, 15
    s_lshl_b32 s75, s75, 8
    s_add_u32 s75, s75, {FLAGS}
    """

    pre = []
    nlate = 20 - gpre
    if prefetch and nlate:
        upw = (nlate * 32 + 63) // 64
        a(f"""
        s_sub_u32 s7, s71, 18
        s_lshl_b32 s7, s7, 2
        s_add_u32 s7, s7, s3
        s_mul_hi_u32 s78, s7, {(1<<32)//upw+1}
        s_mul_i32 s77, s78, {upw}
        s_sub_u32 s77, s7, s77
        s_and_b32 s7, s78, 1
        s_cselect_b32 s32, s54, s52
        s_cselect_b32 s33, s55, s53
        s_mov_b32 s34, {640*3456}
        s_mov_b32 s35, 0x20000
        s_lshr_b32 s78, s78, 1
        s_mul_i32 s77, s77, {64*3456}
        s_add_u32 s77, s77, {32*gpre*3456}
        s_add_u32 s7, s78, s73
        s_lshl_b32 s7, s7, 7
        s_add_u32 s77, s77, s7
        s_cmp_lt_u32 s78, s72
        s_cselect_b32 s77, s77, 0x7000000
        v_mul_u32_u24 v{WOFF}, 3456, v{LANE}
        v_add_u32 v{WOFF}, s77, v{WOFF}
        """)
        pre = [lambda: None] * 5 + [lambda: a.vmem(f"buffer_load_dword v14, v{WOFF}, s[32:35], 0 offen {pf}", "pf")]
    att_tail("N", pre)
    if stamps:
        a("s_mov_b32 s79, 0")
    write_stamps()
    a("s_endpgm")

    a("L_roleG:")
    a(f"""
    s_lshr_b32 s7, s71, 1
    s_add_u32 s73, s73, s7
    s_and_b32 s77, s71, 1
    s_cselect_b32 s32, s54, s52
    s_cselect_b32 s33, s55, s53
    s_mov_b32 s34, {640*3456}
    s_mov_b32 s35, 0x20000
    v_lshrrev_b32 v{T0}, 3, v0
    v_mul_u32_u24 v{WOFF}, 3456, v{T0}
    v_bfe_u32 v{T0}, v0, 4, 1
    v_bfe_u32 v{T1}, v0, 6, 1
    v_lshl_or_b32 v{T0}, v{T1}, 1, v{T0}
    v_lshlrev_b32 v{T0}, 1, v{T0}
    v_and_b32 v{T1}, 7, v0
    v_xor_b32 v{T0}, v{T0}, v{T1}
    v_lshl_add_u32 v{WOFF}, v{T0}, 4, v{WOFF}
    s_lshl_b32 s7, s73, 7
    v_add_u32 v{WOFF}, s7, v{WOFF}
    s_lshl_b32 s78, s3, 10
    s_add_u32 s78, s78, {L_W}
    """)
    def ldG(m):
        def f():
            a(f"s_add_u32 m0, s78, {m*4096}\ns_mov_b32 s65, {m*32*3456}")
            a.vmem(f"buffer_load_dwordx4 v{WOFF}, s[32:35], s65 offen {ff} lds", ("g", m))
        return f
    att_tail("G", [ldG(m) for m in range(gpre)], [ldG(m) for m in range(gpre, 20)])
    XR = QB + 16
    AA, AF, AG, AT = 3, 5, 12, 4
    ldx(XR, "xr")
    a(f"""
    v_lshrrev_b32 v{T0}, 5, v0
    v_and_b32 v{T1}, 31, v0
    v_mul_u32_u24 v{AA}, {ACC1_B}, v{T0}
    v_lshl_add_u32 v{AA}, v{T1}, 4, v{AA}
    v_and_b32 v{T0}, 7, v0
    v_mul_u32_u24 v{AF}, {HN_STR}, v{T0}
    v_bfe_u32 v{T1}, v0, 4, 2
    v_lshl_add_u32 v{AF}, v{T1}, 4, v{AF}
    v_lshlrev_b32 v{AG}, 4, v{T0}
    v_bfe_u32 v{T0}, v0, 3, 2
    v_lshl_add_u32 v{AG}, v{T0}, 2, v{AG}
    v_bfe_u32 v{T0}, v0, 5, 2
    v_lshl_add_u32 v{AG}, v{T0}, 8, v{AG}
    v_lshrrev_b32 v{T0}, 7, v0
    v_lshl_add_u32 v{AG}, v{T0}, 7, v{AG}
    v_bfe_u32 v{T0}, v0, 2, 2
    v_lshl_add_u32 v{T0}, v{T1}, 3, v{T0}
    v_lshlrev_b32 v{AT}, 7, v{T0}
    v_bfe_u32 v{T0}, v0, 3, 2
    v_xor_b32 v{T0}, s3, v{T0}
    v_lshl_add_u32 v{AT}, v{T0}, 5, v{AT}
    v_and_b32 v{T0}, 3, v0
    v_lshl_add_u32 v{AT}, v{T0}, 3, v{AT}
    v_add_u32 v{AT}, {L_W}, v{AT}
    v_add_u32 v{T2}, 40960, v{AT}
    {hint_setup}
    s_mul_i32 s76, s77, 27
    s_add_u32 s76, s76, s73
    s_lshl_b32 s76, s76, 10
    s_add_u32 s76, s76, {SU}
    s_mov_b32 s70, 0xff00ff00
    s_mov_b32 s71, 0xff00ff00
    s_mov_b32 s79, 0
    s_waitcnt vmcnt(0)
    s_barrier
    """)
    a.vm = []
    stamp("wready")
    WT = WO
    for s in range(20):
        for hf in range(2):
            ad, off = (AT, s * 4096 + hf * 512) if s < 10 else (T2, (s - 10) * 4096 + hf * 512)
            a(f"ds_read_b64_tr_b16 {vr(WT+4*s+2*hf,2)}, v{ad} offset:{off}")
        if s % 4 == 3:
            a("s_waitcnt lgkmcnt(4)")
    XF = E + 32
    for i in range(10):
        a(f"v_lshlrev_b32 v{XF+2*i}, 16, v{XR+i}\nv_and_b32 v{XF+2*i+1}, 0xffff0000, v{XR+i}")
    a("s_waitcnt lgkmcnt(0)")
    AC = E
    stamp("drydone")
    hint_wait("G")
    stamp(6)
    a("L_Gread:")
    a(spin())
    for i in range(7):
        a(f"buffer_load_dwordx4 {vr(AC+4*i)}, v{AA}, s[28:31], 0 offen offset:{ACC1 + 512*i} sc1")
    if stamps:
        a("s_add_u32 s79, s79, 1")
    a(f"""
    s_waitcnt vmcnt(0)
    v_min3_f32 v{T0}, v{AC+3}, v{AC+7}, v{AC+11}
    v_min3_f32 v{T1}, v{AC+15}, v{AC+19}, v{AC+23}
    v_min3_f32 v{T0}, v{T0}, v{T1}, v{AC+27}
    v_cmp_neq_f32 vcc, 0x42000000, v{T0}
    s_cbranch_vccnz L_Gread
    """)
    stamp(7)
    H = E + 52
    val = [AC + 4 * (e // 3) + e % 3 for e in range(20)]
    for i in range(10):
        a(f"v_cvt_pk_bf16_f32 v{T0}, v{val[2*i]}, v{val[2*i+1]}")
        a(f"v_lshlrev_b32 v{H+2*i}, 16, v{T0}\nv_and_b32 v{H+2*i+1}, 0xffff0000, v{T0}")
        a(f"v_pk_add_f32 {vr(H+2*i,2)}, {vr(H+2*i,2)}, {vr(XF+2*i,2)}")
        a(f"v_cvt_pk_bf16_f32 v{T0}, v{H+2*i}, v{H+2*i+1}")
        a(f"v_lshlrev_b32 v{H+2*i}, 16, v{T0}\nv_and_b32 v{H+2*i+1}, 0xffff0000, v{T0}")
        if i == 1:
            a(f"v_pk_add_f32 {vr(TT,2)}, {vr(H,2)}, {vr(H+2,2)}")
        elif i > 1:
            a(f"v_pk_add_f32 {vr(TT,2)}, {vr(TT,2)}, {vr(H+2*i,2)}")
    ln_rows(H, AC)
    a("s_waitcnt lgkmcnt(0)\ns_barrier")
    NA = 8
    for s in range(NA):
        a(f"ds_read_b128 {ar(4*s)}, v{AF} offset:{L_HN + 64*s}")
    GD = D[0]
    for s in range(20):
        a(f"s_waitcnt lgkmcnt({min(NA-1, 19-s)})")
        c = "0" if s == 0 else vr(GD)
        a(f"v_mfma_f32_16x16x32_bf16 {vr(GD)}, {vr(WT+4*s)}, {ar(4*s)}, {c}")
        if s + NA < 20:
            a(f"ds_read_b128 {ar(4*(s+NA))}, v{AF} offset:{L_HN + 64*(s+NA)}")
    stamp("b2")
    FA = BA[0]
    a(f"""
    s_cmp_eq_u32 s77, 0
    s_nop 6
    v_cndmask_b32 v{FA}, v{GD}, v{GD+2}, s[70:71]
    v_cndmask_b32 v{FA+1}, v{GD+1}, v{GD+3}, s[70:71]
    v_cvt_pk_bf16_f32 v{T0}, v{FA}, v{FA+1}
    s_cbranch_scc0 L_Gup
    v_lshlrev_b32 v{FA}, 16, v{T0}
    v_and_b32 v{FA+1}, 0xffff0000, v{T0}
    v_mul_f32 v{FA}, 0xbfb8aa3b, v{FA}
    v_mul_f32 v{FA+1}, 0xbfb8aa3b, v{FA+1}
    v_exp_f32 v{FA}, v{FA}
    v_exp_f32 v{FA+1}, v{FA+1}
    v_add_f32 v{FA}, 1.0, v{FA}
    v_add_f32 v{FA+1}, 1.0, v{FA+1}
    v_rcp_f32 v{FA}, v{FA}
    v_rcp_f32 v{FA+1}, v{FA+1}
    s_nop 0
    v_cvt_pk_bf16_f32 v{T0}, v{FA}, v{FA+1}
    L_Gup:
    v_min_u32 v{T0}, -2, v{T0}
    buffer_store_dword v{T0}, v{AG}, s[28:31], s76 offen
    """)
    stamp(8)
    a(f"""
    s_waitcnt vmcnt(0)
    {'s_sleep %d' % slp if slp else ''}
    buffer_store_dword v{T0}, v{AG}, s[28:31], s76 offen sc1
    """)
    write_stamps()
    a("s_endpgm")

    a("L_roleD:")
    att_tail("D", [])
    RAW = E
    a(f"""
    s_mov_b32 s32, s56
    s_mov_b32 s33, s57
    s_mov_b32 s34, {1728*1280}
    s_mov_b32 s35, 0x20000
    v_lshrrev_b32 v{T1}, 4, v{LANE}
    v_mul_u32_u24 v{T1}, {8*1280}, v{T1}
    v_and_b32 v{T0}, 15, v0
    v_lshl_add_u32 v{T1}, v{T0}, 3, v{T1}
    s_add_u32 s73, s73, s3
    s_mul_i32 s7, s73, {64*1280}
    s_lshl_b32 s65, s77, 7
    s_add_u32 s7, s7, s65
    s_cmp_lt_u32 s3, s72
    s_cselect_b32 s7, s7, 0x1000000
    v_add_u32 v{WOFF}, s7, v{T1}
    """)
    for n in range(16):
        s, jj = n // 8, n % 8
        a(f"s_mov_b32 s65, {(32*s+jj)*1280}")
        a(f"buffer_load_dwordx2 {vr(RAW+2*n, 2)}, v{WOFF}, s[32:35], s65 offen {ff}")
    AD, AO, AA1, AC1 = 2, 5, 12, 15
    XD = 92
    a(f"""
    v_lshrrev_b32 v{T0}, 2, v0
    v_mul_u32_u24 v{T0}, 3, v{T0}
    v_and_b32 v{T1}, 3, v0
    v_min_u32 v{T1}, 2, v{T1}
    v_add_u32 v{T0}, v{T0}, v{T1}
    v_lshrrev_b32 v{T1}, 6, v{T0}
    v_and_b32 v{T0}, 63, v{T0}
    v_and_b32 v{T2}, 3, v{T0}
    v_lshlrev_b32 v{T2}, 10, v{T2}
    v_lshrrev_b32 v{TT}, 2, v{T0}
    v_lshl_add_u32 v{T2}, v{TT}, 4, v{T2}
    """)
    for k in range(3):
        a(f"""
        v_add_u32 v{TT}, {3*k}, v{T1}
        v_lshrrev_b32 v{TT+1}, 2, v{TT}
        v_lshl_add_u32 v{TT+1}, v{TT+1}, 8, v{T2}
        v_and_b32 v{TT}, 3, v{TT}
        v_lshl_add_u32 v{AD+k}, v{TT}, 2, v{TT+1}
        """)
    a(f"""
    s_lshl_b32 s7, s77, 6
    v_add_u32 v{T0}, s7, v{T0}
    v_mul_u32_u24 v{AO}, 640, v{T1}
    v_add_lshl_u32 v{AO}, v{AO}, v{T0}, 1
    v_lshrrev_b32 v{TT+2}, 9, v{T0}
    v_sub_u32 v{TT+2}, 3, v{TT+2}
    v_bfe_u32 v{TT}, v{T0}, v{TT+2}, 5
    v_bfe_u32 v{TT+1}, v{T0}, 0, v{TT+2}
    v_lshrrev_b32 v{TT+2}, 8, v{T0}
    v_lshl_add_u32 v{TT+1}, v{TT+2}, 3, v{TT+1}
    v_mul_u32_u24 v{TT+2}, 86, v{TT+1}
    v_lshrrev_b32 v{TT+2}, 8, v{TT+2}
    v_mul_u32_u24 v{TT+3}, 3, v{TT+2}
    v_sub_u32 v{TT+3}, v{TT+1}, v{TT+3}
    v_lshl_add_u32 v{TT}, v{TT+2}, 5, v{TT}
    v_lshlrev_b32 v{TT}, 4, v{TT}
    v_lshl_add_u32 v{TT}, v{TT+3}, 2, v{TT}
    v_mul_u32_u24 v{AA1}, {ACC1_B}, v{T1}
    v_add_u32 v{AA1}, v{AA1}, v{TT}
    v_or_b32 v{AC1}, 12, v{AA1}
    s_lshl_b32 s7, s3, 12
    v_add_u32 v13, s7, v{AL16}
    s_mov_b32 s78, 0x07060302
    s_mov_b32 s79, 0x05040100
    s_lshl_b32 s76, s73, 10
    s_add_u32 s76, s76, {SU}
    s_add_u32 s74, s76, {27*1024}
    s_mul_i32 s77, s77, 3072
    s_add_u32 s77, s77, {ACC3}
    s_mov_b32 s40, {3*1280}
    s_mov_b32 s41, {6*1280}
    s_mov_b32 s42, {3*ACC1_B}
    s_mov_b32 s43, {6*ACC1_B}
    v_cmp_gt_u32 vcc, 0xac, v0
    s_mov_b64 s[44:45], vcc
    v_cmp_gt_u32 vcc, 0xaa, v0
    s_mov_b64 s[52:53], vcc
    {hint_setup}
    """)
    for k in range(3):
        so = ["0", "s40", "s41"][k]
        a(f"buffer_load_ushort v{XD+k}, v{AO}, s[24:27], {so} offen")
    a("s_waitcnt vmcnt(0)")
    a.vm = []
    stamp("wready")
    WT = WO
    transpose(RAW, WT); transpose(RAW + 16, WT + 16)
    SG, UU = BIG, BIG + 4
    a("s_mov_b32 s79, 0")
    for j in range(8):
        a(f"v_mov_b32 v{SG+j}, 0")
    hint_wait("D")
    R = RAW
    a(f"""
    L_Dh1:
    {spin()}
    buffer_load_dword v{R+3}, v{AC1}, s[28:31], 0 offen sc1
    buffer_load_dword v{R+7}, v{AC1}, s[28:31], s42 offen sc1
    buffer_load_dword v{R+11}, v{AC1}, s[28:31], s43 offen sc1
    s_waitcnt vmcnt(0)
    v_cndmask_b32 v{R+11}, v{R+7}, v{R+11}, s[52:53]
    v_min3_f32 v{R+3}, v{R+3}, v{R+7}, v{R+11}
    v_cmp_neq_f32 vcc, 0x42000000, v{R+3}
    s_cbranch_vccnz L_Dh1
    buffer_load_dword v{R+2}, v{AA1}, s[28:31], 0 offen sc1
    buffer_load_dword v{R+6}, v{AA1}, s[28:31], s42 offen sc1
    buffer_load_dword v{R+10}, v{AA1}, s[28:31], s43 offen sc1
    s_waitcnt vmcnt(0)
    """)
    for k in range(3):
        rbf(a, R + 4 * k + 2, R + 4 * k + 2)
        a(f"v_lshlrev_b32 v{XD+k}, 16, v{XD+k}\nv_add_f32 v{XD+k}, v{XD+k}, v{R+4*k+2}")
        rbf(a, XD + k, XD + k)
    stamp(6)
    a(f"""
    s_cmp_lt_u32 s3, s72
    s_cbranch_scc0 L_Dbody
    L_Dpoll2:
    {spin()}
    buffer_load_dwordx4 {vr(SG)}, v{AL16}, s[28:31], s76 offen sc1
    buffer_load_dwordx4 {vr(UU)}, v{AL16}, s[28:31], s74 offen sc1
    s_waitcnt vmcnt(0)
    v_max3_u32 v{T0}, v{SG}, v{SG+1}, v{SG+2}
    v_max3_u32 v{T1}, v{SG+3}, v{UU}, v{UU+1}
    v_max3_u32 v{T0}, v{T0}, v{UU+2}, v{UU+3}
    v_max_u32 v{T0}, v{T0}, v{T1}
    v_cmp_eq_u32 vcc, -1, v{T0}
    s_cbranch_vccnz L_Dpoll2
    """)
    a("L_Dbody:")
    stamp(7)
    HA = BIG + 8; HB = BIG + 12
    for j in range(4):
        a(f"""
        v_lshlrev_b32 v{TT}, 16, v{SG+j}
        v_and_b32 v{TT+1}, 0xffff0000, v{SG+j}
        v_lshlrev_b32 v{TT+2}, 16, v{UU+j}
        v_and_b32 v{TT+3}, 0xffff0000, v{UU+j}
        v_pk_mul_f32 {vr(TT,2)}, {vr(TT,2)}, {vr(TT+2,2)}
        v_cvt_pk_bf16_f32 v{HA+j}, v{TT}, v{TT+1}
        """)
    for j in range(4):
        a(f"v_mov_b32_dpp v{HB+j}, v{HA+j} row_ror:8 {DPPF}")
    GD = QB
    for s in range(2):
        for t in range(4):
            c = "0" if s == 0 else vr(GD + 4 * t)
            a(f"v_mfma_f32_16x16x32_bf16 {vr(GD+4*t)}, {vr(HB if s else HA)}, {vr(WT+16*s+4*t)}, {c}")
    a("s_nop 4")
    stamp("b2")
    for t in range(4):
        a(f"ds_write_b128 v13, {vr(GD+4*t)} offset:{L_OP + 1024*t}")
    a("s_waitcnt lgkmcnt(0)\ns_barrier")
    o = L_OP // 256
    for k in range(3):
        a(f"ds_read2st64_b32 {vr(R+4*k,2)}, v{AD+k} offset0:{o} offset1:{o+16}")
        a(f"ds_read2st64_b32 {vr(R+4*k+2,2)}, v{AD+k} offset0:{o+32} offset1:{o+48}")
    for k in range(3):
        a(f"s_waitcnt lgkmcnt({4-2*k})")
        a(f"v_pk_add_f32 {vr(R+4*k,2)}, {vr(R+4*k,2)}, {vr(R+4*k+2,2)}\nv_add_f32 v{R+4*k}, v{R+4*k}, v{R+4*k+1}")
        a(f"v_cndmask_b32 v{R+4*k+1}, v{R+4*k}, 1.0, s[68:69]")
        if k < 2:
            a(f"buffer_atomic_add_f32 v{R+4*k+1}, v{AAT}, s[28:31], s77 offen offset:{1024*k} sc0")
        else:
            a(f"""
            s_mov_b64 exec, s[44:45]
            s_cbranch_execz L_Dno2
            buffer_atomic_add_f32 v{R+9}, v{AAT}, s[28:31], s77 offen offset:2048 sc0
            L_Dno2:
            s_mov_b64 exec, -1
            """)
    stamp("b1d")
    a("s_andn2_b64 s[52:53], s[52:53], s[68:69]\ns_not_b64 s[68:69], s[68:69]")
    a("s_waitcnt vmcnt(0)")
    stamp(8)
    for k in range(3):
        r = R + 4 * k
        so = ["0", "s40", "s41"][k]
        a(f"""
        v_add_f32 v{r}, v{r}, v{r+1}
        v_cvt_pk_bf16_f32 v{r}, v{r}, v{r}
        v_mov_b32_dpp v{r+3}, v{r+1} quad_perm:[3,3,3,3] {DPPF}
        v_and_b32 v{r}, 0xffff0000, v{r}
        v_cmp_eq_f32 vcc, 0x40e00000, v{r+3}
        v_add_f32 v{r}, v{r}, v{XD+k}
        v_cvt_pk_bf16_f32 v{r}, v{r}, v{r}
        s_and_b64 exec, vcc, {'s[52:53]' if k == 2 else 's[68:69]'}
        s_cbranch_execz L_Dns{k}
        buffer_store_short v{r}, v{AO}, s[36:39], {so} offen
        L_Dns{k}:
        s_mov_b64 exec, -1
        """)
    write_stamps()
    a("L_end:")
    a("s_endpgm")
    a(slow)

    if stamps: a.L.insert(0, "; stamps " + repr(stamps))
    head = open("sequential_preLN__sliding_block_cached__glu_gated_glu__decode.s.ref").read().split("; Override launch")[0]
    out = head + f"; @launch grid=(256,1,1) block=(256,1,1) lds={LDS_BYTES}\n"
    out += '.amdgcn_target "amdgcn-amd-amdhsa--gfx950"\n.text\n'
    out += f".globl {KN}\n.p2align 8\n.type {KN},@function\n{KN}:\n"
    out += "\n".join(a.L) + "\n"
    out += f""".section .rodata,"a"
.p2align 6
.amdhsa_kernel {KN}
  .amdhsa_next_free_vgpr 512
  .amdhsa_next_free_sgpr 102
  .amdhsa_accum_offset 256
  .amdhsa_group_segment_fixed_size 0
  .amdhsa_kernarg_size 96
  .amdhsa_user_sgpr_count 2
  .amdhsa_user_sgpr_kernarg_segment_ptr 1
  .amdhsa_system_sgpr_workgroup_id_x 1
  .amdhsa_float_denorm_mode_32 3
.end_amdhsa_kernel
"""
    return out

if __name__ == "__main__":
    kw = {}
    for x in sys.argv[2:]:
        k, v = x.split("=", 1)
        kw[k] = eval(v)
    open(sys.argv[1], "w").write(gen(**kw))
```
